```python
import torch

def _softmax(x, axis=-1):
    return torch.softmax(x, dim=axis)
def _gelu(x):
    return torch.nn.functional.gelu(x, approximate="tanh")
def _silu(x):
    return torch.nn.functional.silu(x)
def _sigmoid(x):
    return torch.sigmoid(x)
def _layernorm(x, axis=-1, eps=1e-5):
    m = x.mean(dim=axis, keepdim=True)
    v = x.var(dim=axis, keepdim=True, unbiased=False)
    return (x - m) / torch.sqrt(v + eps)
def _scatter_add(tgt, idx, src, axis=0):
    return tgt.clone().index_add_(axis, idx, src)
def _segment_sum(src, seg, n):
    out = torch.zeros((n,) + src.shape[1:], dtype=src.dtype)
    return out.index_add_(0, seg, src)
def _pad(x, pw):
    flat = tuple(v for pair in reversed(pw) for v in pair)
    return torch.nn.functional.pad(x, flat)

kernel_name = 'recurrent_scan__ssm_conv_s4d__dense_activation_mish__prompt'

def setup_inputs():

    _w = (lambda a: (lambda t: t.to(torch.bfloat16) if t.is_floating_point() else t)(torch.as_tensor(a)))
    def _A_setup():
        Bsz, L, D, N = 1, 2048, 448, 256
        return {
            "u": _w((lambda *s: torch.randn(*s, dtype=torch.bfloat16) * 0.05)(Bsz, L, D)),
            "log_A_real": _w((lambda *s: torch.randn(*s, dtype=torch.bfloat16) * 3.2)(D, N) * 0.5),
            "A_imag": _w((lambda *s: torch.randn(*s, dtype=torch.bfloat16) * 0.2)(D, N) * 3.14),
            "C_real": _w((lambda *s: torch.randn(*s, dtype=torch.bfloat16) * 0.8)(D, N) / N ** 0.5),
            "C_imag": _w((lambda *s: torch.randn(*s, dtype=torch.bfloat16) * 0.8)(D, N) / N ** 0.5),
            "log_dt": _w((lambda *s: torch.randn(*s, dtype=torch.bfloat16) * 0.2)(D) * 0.5 - 4.0),
            "D_skip": _w((lambda *s: torch.randn(*s, dtype=torch.bfloat16) * 0.2)(D)),
        }
    _A_in = _A_setup()

    def _B_setup():
        B, S, D, F = 1, 2048, 448, 1792
        return {
            "x": _w((lambda *s: torch.randn(*s, dtype=torch.bfloat16) * 0.05)(B, S, D)),
            "w1": _w((lambda *s: torch.randn(*s, dtype=torch.bfloat16) * 0.8)(D, F) * (D ** -0.5)),
            "b1": _w((lambda *s: torch.randn(*s, dtype=torch.bfloat16) * 0.4)(F)),
            "w2": _w((lambda *s: torch.randn(*s, dtype=torch.bfloat16) * 0.1)(F, D) * (F ** -0.5)),
        }
    _B_in = _B_setup()

    return {
        "A_u": _A_in["u"],
        "A_log_A_real": _A_in["log_A_real"],
        "A_A_imag": _A_in["A_imag"],
        "A_C_real": _A_in["C_real"],
        "A_C_imag": _A_in["C_imag"],
        "A_log_dt": _A_in["log_dt"],
        "A_D_skip": _A_in["D_skip"],
        "B_x": _B_in["x"],
        "B_w1": _B_in["w1"],
        "B_b1": _B_in["b1"],
        "B_w2": _B_in["w2"],
    }

def reference(A_u, A_log_A_real, A_A_imag, A_C_real, A_C_imag, A_log_dt, A_D_skip, B_x, B_w1, B_b1, B_w2):
    def _A_ref(u, log_A_real, A_imag, C_real, C_imag, log_dt, D_skip):
        L = u.shape[1]
        dt = torch.exp(log_dt)
        A = -torch.exp(log_A_real) + 1j * A_imag
        C = (C_real + 1j * C_imag) * dt[:, None]
        pos = (lambda x, dt: x.to(dt))(torch.arange(L), log_dt.dtype)
        P = torch.exp((A * dt[:, None])[:, :, None] * pos[None, None, :])
        K = 2.0 * torch.einsum("dn,dnl->dl", C, P).real
        L2 = 2 * L
        u_t = (lambda x, *d: x.permute(*d))(u, 0, 2, 1)
        Kf = (lambda x, *a, **k: torch.fft.rfft(x.float(), *a, **k))(K, L2)
        Uf = (lambda x, *a, **k: torch.fft.rfft(x.float(), *a, **k))(u_t, L2)
        y = (lambda x, *a, **k: torch.fft.irfft(x, *a, **k).to(torch.bfloat16))(Uf * Kf[None, :, :], L2)[:, :, :L]
        y = (lambda x, *d: x.permute(*d))(y, 0, 2, 1)
        return y + u * D_skip[None, None, :]

    def _B_ref(x, w1, b1, w2):
        h = torch.einsum("bsd,df->bsf", x, w1) + b1
        sp = torch.log1p(torch.exp(-torch.abs(h))) + torch.where(h > 0, h, torch.zeros_like(h))
        act = h * torch.tanh(sp)
        return torch.einsum("bsf,fd->bsd", act, w2)

    x = A_u
    xn = _layernorm(x, axis=-1)
    s = _A_ref(xn, A_log_A_real, A_A_imag, A_C_real, A_C_imag, A_log_dt, A_D_skip)
    g = _silu(_B_ref(xn, B_w1, B_b1, B_w2))
    return x + s * g
```

```python
class Asm:
    def __init__(self):
        self.lines = []
        self.nlab = 0
    def __call__(self, s):
        for l in s.strip("\n").split("\n"):
            self.lines.append("    " + l.strip() if not l.strip().endswith(":") else l.strip())
    def label(self, base="L"):
        self.nlab += 1
        return f"{base}_{self.nlab}"
    def raw(self, s):
        self.lines.append(s)
    def text(self):
        return "\n".join(self.lines) + "\n"

def vr(a, n=1):
    return f"v{a}" if n == 1 else f"v[{a}:{a+n-1}]"
def sr(a, n=1):
    return f"s{a}" if n == 1 else f"s[{a}:{a+n-1}]"
def ar(a, n=1):
    return f"a{a}" if n == 1 else f"a[{a}:{a+n-1}]"

def srd(A, s, base, nbytes, off=None):
    if off:
        A(f"s_add_u32 s{s}, s{base}, {off}")
        A(f"s_addc_u32 s{s+1}, s{base+1}, 0")
    else:
        A(f"s_mov_b32 s{s}, s{base}")
        A(f"s_mov_b32 s{s+1}, s{base+1}")
    A(f"s_mov_b32 s{s+2}, {nbytes}")
    A(f"s_mov_b32 s{s+3}, 0x00020000")

def cmul(A, R, X, Y):
    A(f"v_pk_mul_f32 {vr(R,2)}, {vr(X,2)}, {vr(Y,2)} op_sel:[0,0] op_sel_hi:[0,1]")
    A(f"v_pk_fma_f32 {vr(R,2)}, {vr(X,2)}, {vr(Y,2)}, {vr(R,2)} op_sel:[1,1,0] op_sel_hi:[1,0,1] neg_lo:[0,1,0]")

def kernel_head(name):
    return f""".globl {name}
.p2align 8
.type {name},@function
{name}:
"""
def kernel_desc(name, vgpr, sgpr=102, accum=None, ydim=False):
    accum = accum if accum is not None else (vgpr + 3)//4*4
    return f""".amdhsa_kernel {name}
  .amdhsa_next_free_vgpr {vgpr}
  .amdhsa_next_free_sgpr {sgpr}
  .amdhsa_accum_offset {accum}
  .amdhsa_group_segment_fixed_size 0
  .amdhsa_kernarg_size 112
  .amdhsa_user_sgpr_count 2
  .amdhsa_user_sgpr_kernarg_segment_ptr 1
  .amdhsa_system_sgpr_workgroup_id_x 1
.end_amdhsa_kernel
"""
KA = dict(u=0, logA=8, Aim=16, Cre=24, Cim=32, logdt=40, Dskip=48, Bx=56, w1=64, b1=72, w2=80, out=88, dbg=96, ws=104)
L_, D_, F_ = 2048, 448, 1792
WS_K   = 0
WS_XT  = WS_K + 448*4096
WS_ST  = WS_XT + 448*4096
WS_XF  = WS_ST + 448*4096
WS_W1F = WS_XF + 64*28*1024
WS_W2F = WS_W1F + 56*28*1024
WS_HF  = WS_W2F + 14*112*1024
WS_END = WS_HF + 64*112*1024
LOG2E = 0x3fb8aa3b
INV2PI = 0x3e22f983
```

```python
import sys
from asmlib import *
import importlib
def build(launches, roles, fname):
    s = ""
    for (n, g, b, l) in launches:
        s += f"; @launch kernel={n} grid=({g},1,1) block=({b},1,1) lds={l}\n"
    s += '.amdgcn_target "amdgcn-amd-amdhsa--gfx950"\n.text\n'
    seen = []
    for (n, g, b, l) in launches:
        if n in seen: continue
        seen.append(n)
        A = Asm(); A.nlab = 1000*len(seen)
        roles[n][0](A)
        s += kernel_head(n) + A.text()
    s += '.section .rodata,"a"\n'
    for n in seen:
        s += ".p2align 6\n" + kernel_desc(n, roles[n][1], accum=roles[n][2] if len(roles[n]) > 2 else None)
    open(fname, "w").write(s)
```

```python
from asmlib import *
CV_COPY = 4160
CV_U = 4*CV_COPY
CV_CH = CV_U + 512 + 4096
CV_LDS = 2*CV_CH
def cv_role(A, s_blk, lds0=0, post=None):
    A(f"""
    s_load_dwordx2 s[4:5], s[0:1], {KA['ws']}
    v_and_b32 v1, 63, v0
    v_lshrrev_b32 v2, 6, v0
    s_nop 0
    v_readfirstlane_b32 s6, v2
    s_nop 3
    s_lshr_b32 s7, s6, 1
    s_and_b32 s6, s6, 1
    s_lshl_b32 s8, {s_blk}, 1
    s_add_u32 s8, s8, s7
    s_lshl_b32 s9, s8, 12
    s_mul_i32 s10, s7, {CV_CH}
    s_add_u32 s10, s10, {lds0}
    s_waitcnt lgkmcnt(0)
    """)
    def chan_srd(s, off):
        A(f"s_add_u32 s{s}, s4, s9")
        A(f"s_addc_u32 s{s+1}, s5, 0")
        if off:
            A(f"s_add_u32 s{s}, s{s}, {off}")
            A(f"s_addc_u32 s{s+1}, s{s+1}, 0")
        A(f"s_mov_b32 s{s+2}, 4096")
        A(f"s_mov_b32 s{s+3}, 0x00020000")
    chan_srd(12, WS_K); chan_srd(16, WS_XT); chan_srd(20, WS_ST)
    A(f"""
    s_lshl_b32 s11, s6, 6
    v_add_u32 v3, s11, v1
    v_lshlrev_b32 v4, 4, v3
    v_subrev_u32 v5, 8, v4
    buffer_load_dwordx4 v[8:11], v4, s[12:15], 0 offen
    buffer_load_dwordx2 v[12:13], v5, s[12:15], 0 offen
    buffer_load_dwordx4 v[16:19], v4, s[12:15], 0 offen offset:2048
    buffer_load_dwordx2 v[20:21], v4, s[12:15], 0 offen offset:2040
    buffer_load_dwordx4 v[24:27], v4, s[16:19], 0 offen
    buffer_load_dwordx4 v[28:31], v4, s[16:19], 0 offen offset:2048
    """)
    A(f"""
    v_mov_b32 v32, 0
    v_mov_b32 v33, 0
    v_mov_b32 v34, 0
    v_mov_b32 v35, 0
    v_lshlrev_b32 v6, 4, v1
    v_add_u32 v6, s10, v6
    v_cmp_gt_u32 vcc, 32, v1
    s_and_saveexec_b64 s[24:25], vcc
    ds_write_b128 v6, v[32:35] offset:{CV_U}
    s_mov_b64 exec, s[24:25]
    v_lshrrev_b32 v7, 1, v1
    v_mul_u32_u24 v7, {CV_COPY}, v7
    v_and_b32 v36, 1, v1
    v_lshl_add_u32 v7, v36, 4, v7
    v_add_u32 v7, s10, v7
    v_cmp_gt_u32 vcc, 8, v1
    s_and_saveexec_b64 s[24:25], vcc
    ds_write_b128 v7, v[32:35]
    s_mov_b64 exec, s[24:25]
    """)
    A(f"""
    v_add_u32 v36, s10, v4
    v_add_u32 v37, {CV_U+512}, v36
    v_add_u32 v36, 32, v36
    """)
    A(f"""
    v_lshrrev_b32 v40, 4, v1
    v_and_b32 v41, 15, v1
    v_lshrrev_b32 v42, 2, v41
    v_and_b32 v43, 3, v41
    v_mul_u32_u24 v38, {CV_COPY}, v42
    v_lshl_add_u32 v38, v43, 3, v38
    v_lshlrev_b32 v44, 4, v40
    v_sub_u32 v38, v38, v44
    v_add_u32 v38, 56, v38
    v_add_u32 v38, s10, v38
    v_lshlrev_b32 v39, 5, v41
    v_add_u32 v39, v39, v44
    v_add_u32 v39, {CV_U + 512 - 32 - 448}, v39
    v_add_u32 v39, s10, v39
    """)
    A(f"""
    v_lshlrev_b32 v45, 5, v41
    v_lshl_add_u32 v45, v40, 3, v45
    """)
    def build(k0, p0, woff):
        a = 46
        A(f"v_alignbyte_b32 v{a}, v{p0+1}, v{p0}, 2")
        A(f"v_alignbyte_b32 v{a+1}, v{k0}, v{p0+1}, 2")
        A(f"v_alignbyte_b32 v{a+2}, v{k0+1}, v{k0}, 2")
        A(f"v_alignbyte_b32 v{a+3}, v{k0+2}, v{k0+1}, 2")
        A(f"v_alignbyte_b32 v{a+4}, v{k0+3}, v{k0+2}, 2")
        A(f"ds_write_b128 v36, {vr(k0,4)} offset:{woff}")
        A(f"v_mov_b32 v52, v{p0+1}")
        A(f"v_mov_b32 v53, v{k0}")
        A(f"v_mov_b32 v54, v{k0+1}")
        A(f"v_mov_b32 v55, v{k0+2}")
        A(f"ds_write_b128 v36, v[52:55] offset:{woff + 2*CV_COPY}")
        A(f"ds_write_b128 v36, v[46:49] offset:{woff + 3*CV_COPY}")
        A(f"v_mov_b32 v56, v47")
        A(f"v_mov_b32 v57, v48")
        A(f"v_mov_b32 v58, v49")
        A(f"v_mov_b32 v59, v50")
        A(f"ds_write_b128 v36, v[56:59] offset:{woff + 1*CV_COPY}")
    A("s_waitcnt vmcnt(4)")
    build(8, 12, 0)
    A("s_waitcnt vmcnt(2)")
    build(16, 20, 2048)
    A("s_waitcnt vmcnt(0)")
    A("ds_write_b128 v37, v[24:27]")
    A("ds_write_b128 v37, v[28:31] offset:2048")
    A("s_waitcnt lgkmcnt(0)")
    A("s_barrier")
    ACC = 64; BR = 96; AR = 224; NA = 6
    Lp1 = A.label("Lcv_p1"); Lj = A.label("Lcv_join")
    A("s_cmp_eq_u32 s6, 1")
    A(f"s_cbranch_scc1 {Lp1}")
    def variant(D):
        for si, d in enumerate(D):
            for mu in range(8):
                A(f"ds_read_b128 {vr(BR + 32*si + 4*mu, 4)}, v39 offset:{512*d + 64*(7-mu)}")
        mmax = 8*(8 - D[0])
        def issueA(m):
            r = AR + 4*(m % NA)
            A(f"ds_read_b64_tr_b16 {vr(r,2)}, v38 offset:{64*m + 8}")
            A(f"ds_read_b64_tr_b16 {vr(r+2,2)}, v38 offset:{64*m}")
        LA = NA - 1
        for m in range(LA): issueA(m)
        touched = set()
        for m in range(mmax):
            mp, mu = divmod(m, 8)
            if m + LA < mmax:
                issueA(m + LA)
                A(f"s_waitcnt lgkmcnt({2*LA})")
            else:
                A(f"s_waitcnt lgkmcnt({2*(mmax-1-m)})")
            r = AR + 4*(m % NA)
            for si, d in enumerate(D):
                q = mp + d
                if q > 7: continue
                c = vr(ACC + 4*q, 4) if q in touched else "0"
                touched.add(q)
                A(f"v_mfma_f32_16x16x32_bf16 {vr(ACC+4*q,4)}, {vr(r,4)}, {vr(BR+32*si+4*mu,4)}, {c}")
        return touched
    t0 = variant([0, 3, 4, 7])
    assert t0 == set(range(8))
    A(f"s_branch {Lj}")
    A(f"{Lp1}:")
    A(f"v_mov_b32 v{ACC}, 0"); A(f"v_mov_b32 v{ACC+1}, 0"); A(f"v_mov_b32 v{ACC+2}, 0"); A(f"v_mov_b32 v{ACC+3}, 0")
    t1 = variant([1, 2, 5, 6])
    assert t1 == set(range(1, 8))
    A(f"{Lj}:")
    A(f"""
    s_barrier
    s_lshl_b32 s11, s6, 12
    s_add_u32 s11, s11, s10
    v_lshlrev_b32 v6, 4, v1
    v_add_u32 v7, s11, v6
    s_xor_b32 s26, s6, 1
    s_lshl_b32 s26, s26, 12
    s_add_u32 s26, s26, s10
    v_add_u32 v6, s26, v6
    """)
    Le1 = A.label("Lcv_e1"); Le2 = A.label("Lcv_e2")
    A("s_cmp_eq_u32 s6, 1")
    A(f"s_cbranch_scc1 {Le1}")
    def fin(send, keep):
        for j, q in enumerate(send):
            A(f"ds_write_b128 v7, {vr(ACC+4*q,4)} offset:{1024*j}")
        A("s_waitcnt lgkmcnt(0)")
        A("s_barrier")
        for j in range(4):
            A(f"ds_read_b128 {vr(8+4*j,4)}, v6 offset:{1024*j}")
        for j, q in enumerate(keep):
            A(f"s_waitcnt lgkmcnt({3-j})")
            for i in range(4):
                A(f"v_add_f32 v{8+4*j+i}, v{8+4*j+i}, v{ACC+4*q+i}")
            A(f"v_cvt_pk_bf16_f32 v{8+4*j}, v{8+4*j}, v{8+4*j+1}")
            A(f"v_cvt_pk_bf16_f32 v{8+4*j+1}, v{8+4*j+2}, v{8+4*j+3}")
            A(f"buffer_store_dwordx2 {vr(8+4*j,2)}, v45, s[20:23], 0 offen offset:{512*q}" + (post or ""))
    fin([4,5,6,7], [0,1,2,3])
    A(f"s_branch {Le2}")
    A(f"{Le1}:")
    fin([0,1,2,3], [4,5,6,7])
    A(f"{Le2}:")
```

```python
from asmlib import *
G1_SLOT = 16384; G1_NSLOT = 5
G1_LDS = G1_SLOT*G1_NSLOT
def mish8(A, regs, tmp):
    n = len(regs)
    T = [tmp+i for i in range(n)]; U = [tmp+n+i for i in range(n)]
    for i, r in enumerate(regs): A(f"v_mul_f32 v{T[i]}, s40, v{r}")
    for i in range(n): A(f"v_exp_f32 v{T[i]}, v{T[i]}")
    for i in range(n): A(f"v_add_f32 v{U[i]}, 2.0, v{T[i]}")
    for i in range(n): A(f"v_fma_f32 v{T[i]}, v{T[i]}, v{U[i]}, 2.0")
    for i in range(n): A(f"v_rcp_f32 v{T[i]}, v{T[i]}")
    for i in range(n): A(f"v_fma_f32 v{T[i]}, v{T[i]}, -2.0, 1.0")
    for i, r in enumerate(regs): A(f"v_mul_f32 v{r}, v{r}, v{T[i]}")

def g1_role(A, s_blk, lds0=0):
    A(f"""
    s_load_dwordx2 s[4:5], s[0:1], {KA['ws']}
    s_load_dwordx2 s[6:7], s[0:1], {KA['b1']}
    v_and_b32 v1, 63, v0
    v_lshrrev_b32 v2, 6, v0
    s_nop 0
    v_readfirstlane_b32 s8, v2
    s_and_b32 s9, {s_blk}, 15
    s_lshr_b32 s10, {s_blk}, 4
    s_waitcnt lgkmcnt(0)
    """)
    srd(A, 12, 4, 56*28*1024, off=WS_W1F)
    srd(A, 16, 4, 64*28*1024, off=WS_XF)
    srd(A, 20, 4, 64*112*1024, off=WS_HF)
    srd(A, 24, 6, 1792*2)
    A(f"""
    s_lshl_b32 s28, s10, 2
    s_add_u32 s28, s28, s8
    s_mul_i32 s28, s28, {28*1024}
    s_lshl_b32 s29, s9, 2
    s_add_u32 s29, s29, s8
    s_mul_i32 s29, s29, {28*1024}
    v_lshlrev_b32 v3, 4, v1
    s_lshl_b32 s30, s8, 11
    s_add_u32 s30, s30, {lds0}
    s_mov_b32 s40, {LOG2E:#x}
    """)
    def dma(slot_sreg):
        A(f"s_add_u32 m0, s30, {slot_sreg}")
        A("s_nop 0")
        A("buffer_load_dwordx4 v3, s[12:15], s28 offen lds")
        A("buffer_load_dwordx4 v3, s[12:15], s28 offen offset:1024 lds")
        A("s_add_u32 m0, m0, 8192")
        A("s_add_u32 s28, s28, 2048")
        A("buffer_load_dwordx4 v3, s[16:19], s29 offen lds")
        A("buffer_load_dwordx4 v3, s[16:19], s29 offen offset:1024 lds")
        A("s_add_u32 s29, s29, 2048")
    A(f"""
    s_and_b32 s32, s8, 1
    s_lshr_b32 s33, s8, 1
    s_lshl_b32 s34, s10, 8
    s_lshl_b32 s35, s32, 7
    s_add_u32 s34, s34, s35
    v_lshrrev_b32 v4, 5, v1
    v_lshlrev_b32 v4, 3, v4
    """)
    for a in range(2):
        for j in range(4):
            A(f"buffer_load_dwordx2 {vr(72+8*a+2*j,2)}, v4, s[24:27], s34 offen offset:{64*a+16*j}")
    for c in range(4):
        A(f"s_mov_b32 s31, {c*G1_SLOT}")
        dma("s31")
    ACC = 8
    A(f"""
    s_lshl_b32 s35, s32, 12
    s_add_u32 s35, s35, {lds0}
    v_add_u32 v5, s35, v3
    s_lshl_b32 s36, s33, 12
    s_add_u32 s36, s36, {lds0 + 8192}
    v_add_u32 v6, s36, v3
    s_waitcnt vmcnt(16)
    """)
    for a in range(2):
        for j in range(4):
            s0 = 72+8*a+2*j
            for b in range(2):
                d = ACC + 32*a + 16*b + 4*j
                A(f"v_lshlrev_b32 v{d}, 16, v{s0}")
                A(f"v_and_b32 v{d+1}, 0xffff0000, v{s0}")
                A(f"v_lshlrev_b32 v{d+2}, 16, v{s0+1}")
                A(f"v_and_b32 v{d+3}, 0xffff0000, v{s0+1}")
    FR = 72
    A("s_mov_b32 s37, 0")
    A("s_mov_b32 s38, 0")
    A(f"s_mov_b32 s39, {4*G1_SLOT}")
    Ll = A.label("Lg1"); Lnd = A.label("Lg1nd"); Lw = A.label("Lg1w"); Lw2 = A.label("Lg1w2")
    A(f"{Ll}:")
    A(f"""
    s_cmp_ge_u32 s37, 11
    s_cbranch_scc1 {Lw}
    s_waitcnt vmcnt(12)
    s_branch {Lw2}
    {Lw}:
    s_waitcnt vmcnt(0)
    {Lw2}:
    s_barrier
    v_add_u32 v7, s38, v5
    v_add_u32 v104, s38, v6
    """)
    for k in range(2):
        A(f"ds_read_b128 {vr(FR+16*k,4)}, v7 offset:{1024*k}")
        A(f"ds_read_b128 {vr(FR+16*k+8,4)}, v104 offset:{1024*k}")
        A(f"ds_read_b128 {vr(FR+16*k+4,4)}, v7 offset:{2048+1024*k}")
        A(f"ds_read_b128 {vr(FR+16*k+12,4)}, v104 offset:{2048+1024*k}")
    A(f"""
    s_cmp_ge_u32 s37, 10
    s_cbranch_scc1 {Lnd}
    """)
    dma("s39")
    A(f"{Lnd}:")
    for k in range(2):
        A(f"s_waitcnt lgkmcnt({4*(1-k)})")
        for a in range(2):
            for b in range(2):
                d = ACC + 32*a + 16*b
                A(f"v_mfma_f32_32x32x16_bf16 {vr(d,16)}, {vr(FR+16*k+4*a,4)}, {vr(FR+16*k+8+4*b,4)}, {vr(d,16)}")
    A(f"""
    s_add_u32 s38, s38, {G1_SLOT}
    s_cmp_eq_u32 s38, {G1_SLOT*G1_NSLOT}
    s_cselect_b32 s38, 0, s38
    s_add_u32 s39, s39, {G1_SLOT}
    s_cmp_eq_u32 s39, {G1_SLOT*G1_NSLOT}
    s_cselect_b32 s39, 0, s39
    s_add_u32 s37, s37, 1
    s_cmp_lt_u32 s37, 14
    s_cbranch_scc1 {Ll}
    """)
    A(f"""
    s_lshl_b32 s41, s9, 2
    s_lshl_b32 s42, s33, 1
    s_add_u32 s41, s41, s42
    s_mul_i32 s41, s41, 112
    s_lshl_b32 s42, s10, 3
    s_add_u32 s41, s41, s42
    s_lshl_b32 s42, s32, 2
    s_add_u32 s41, s41, s42
    s_lshl_b32 s41, s41, 10
    s_add_u32 s42, s41, {112*1024}
    s_nop 4
    """)
    for b in range(2):
        for a in range(2):
            for kap in range(2):
                d = ACC + 32*a + 16*b + 8*kap
                mish8(A, list(range(d, d+8)), 72)
                o = 88 + 4*((2*a+kap) % 2)
                for j in range(4):
                    A(f"v_cvt_pk_bf16_f32 v{o+j}, v{d+2*j}, v{d+2*j+1}")
                A(f"buffer_store_dwordx4 {vr(o,4)}, v3, s[20:23], s{41+b} offen offset:{1024*(2*a+kap)}")

G2_LDS = 4*3*4096 + 4*2048
def g2_role(A, s_blk, lds0=0, R=6, wait_flags=None):
    A(f"""
    s_load_dwordx2 s[4:5], s[0:1], {KA['ws']}
    s_load_dwordx2 s[6:7], s[0:1], {KA['u']}
    s_load_dwordx2 s[44:45], s[0:1], {KA['out']}
    v_and_b32 v1, 63, v0
    v_lshrrev_b32 v2, 6, v0
    s_nop 0
    v_readfirstlane_b32 s8, v2
    s_and_b32 s9, {s_blk}, 31
    s_lshr_b32 s10, {s_blk}, 5
    v_lshlrev_b32 v3, 4, v1
    s_waitcnt lgkmcnt(0)
    """)
    srd(A, 12, 4, 14*112*1024, off=WS_W2F)
    srd(A, 16, 4, 64*112*1024, off=WS_HF)
    srd(A, 20, 4, 448*4096, off=WS_ST)
    srd(A, 24, 6, 2048*896)
    srd(A, 28, 44, 2048*896)
    A(f"""
    s_mul_i32 s32, s8, 28
    s_mul_i32 s33, s10, 224
    s_add_u32 s33, s33, s32
    s_lshl_b32 s33, s33, 10
    s_add_u32 s34, s33, {112*1024}
    s_mul_i32 s35, s9, 224
    s_add_u32 s35, s35, s32
    s_lshl_b32 s35, s35, 10
    s_add_u32 s36, s35, {112*1024}
    """)
    ACC = 8; FR = 72
    def load(ks):
        r = FR + 16*(ks % R); off = 1024*(ks % 4)
        A(f"buffer_load_dwordx4 {vr(r,4)}, v3, s[12:15], s33 offen offset:{off}")
        A(f"buffer_load_dwordx4 {vr(r+8,4)}, v3, s[16:19], s35 offen offset:{off}")
        A(f"buffer_load_dwordx4 {vr(r+4,4)}, v3, s[12:15], s34 offen offset:{off}")
        A(f"buffer_load_dwordx4 {vr(r+12,4)}, v3, s[16:19], s36 offen offset:{off}")
        if ks % 4 == 3:
            for s in (33, 34, 35, 36): A(f"s_add_u32 s{s}, s{s}, 4096")
    for ks in range(R-1): load(ks)
    for ks in range(28):
        if ks + R - 1 < 28:
            load(ks + R - 1)
            A(f"s_waitcnt vmcnt({4*(R-1)})")
        else:
            A(f"s_waitcnt vmcnt({4*(27-ks)})")
        r = FR + 16*(ks % R)
        for a in range(2):
            for b in range(2):
                d = ACC + 32*a + 16*b
                c = vr(d,16) if ks > 0 else "0"
                A(f"v_mfma_f32_32x32x16_bf16 {vr(d,16)}, {vr(r+4*a,4)}, {vr(r+8+4*b,4)}, {c}")
    A(f"""
    s_lshr_b32 s37, s8, 1
    s_and_b32 s38, s8, 1
    s_lshl_b32 s39, s9, 6
    s_lshl_b32 s40, s38, 5
    s_add_u32 s39, s39, s40
    s_lshl_b32 s41, s10, 6
    s_lshl_b32 s40, s37, 5
    s_add_u32 s41, s41, s40
    s_mul_i32 s42, s39, 896
    s_lshl_b32 s40, s41, 1
    s_add_u32 s42, s42, s40
    v_and_b32 v4, 31, v1
    v_lshrrev_b32 v5, 5, v1
    v_mul_u32_u24 v6, 896, v4
    v_lshl_add_u32 v6, v5, 3, v6
    """)
    for j in range(4):
        A(f"buffer_load_dwordx2 {vr(72+2*j,2)}, v6, s[24:27], s42 offen offset:{16*j}")
    if wait_flags: wait_flags(A)
    A(f"""
    v_lshrrev_b32 v7, 2, v1
    v_and_b32 v80, 3, v1
    v_lshlrev_b32 v7, 12, v7
    v_lshl_add_u32 v7, v80, 4, v7
    s_lshl_b32 s43, s41, 12
    s_lshl_b32 s40, s39, 1
    s_add_u32 s43, s43, s40
    s_add_u32 s46, s43, {16*4096}
    buffer_load_dwordx4 v[80:83], v7, s[20:23], s43 offen{' sc1' if wait_flags else ''}
    buffer_load_dwordx4 v[84:87], v7, s[20:23], s46 offen{' sc1' if wait_flags else ''}
    """)
    for o in range(4):
        pass
    Lr = [A.label(f"Lg2r{w}") for w in range(4)]; Lre = A.label("Lg2re")
    A(f"v_add_u32 v88, {lds0}, v3")
    for w in range(3):
        A(f"s_cmp_eq_u32 s8, {w}")
        A(f"s_cbranch_scc1 {Lr[w]}")
    A(f"s_branch {Lr[3]}")
    for w in range(4):
        A(f"{Lr[w]}:")
        for o in range(4):
            if o == w: continue
            slot = (w - o - 1) % 4
            d = ACC + 32*(o >> 1) + 16*(o & 1)
            for j in range(4):
                A(f"ds_write_b128 v88, {vr(d+4*j,4)} offset:{o*12288 + slot*4096 + j*1024}")
        d = ACC + 32*(w >> 1) + 16*(w & 1)
        if d != ACC:
            for i in range(16): A(f"v_mov_b32 v{ACC+i}, v{d+i}")
        A(f"s_branch {Lre}")
    A(f"{Lre}:")
    A(f"""
    s_lshl_b32 s40, s8, 11
    s_add_u32 s40, s40, {lds0 + 49152}
    v_add_u32 v89, s40, v3
    s_waitcnt vmcnt(0)
    ds_write_b128 v89, v[80:83]
    ds_write_b128 v89, v[84:87] offset:1024
    s_mul_i32 s47, s8, 12288
    v_add_u32 v88, s47, v88
    s_waitcnt lgkmcnt(0)
    s_barrier
    """)
    for sl in range(3):
        for j in range(4):
            A(f"ds_read_b128 {vr(24+16*sl+4*j,4)}, v88 offset:{sl*4096 + j*1024}")
    A(f"""
    v_lshrrev_b32 v90, 4, v1
    v_and_b32 v91, 15, v1
    v_lshrrev_b32 v92, 2, v91
    v_and_b32 v93, 3, v91
    v_lshrrev_b32 v94, 1, v90
    v_and_b32 v90, 1, v90
    v_lshl_add_u32 v92, v94, 2, v92
    v_lshlrev_b32 v92, 6, v92
    v_lshl_add_u32 v92, v90, 5, v92
    v_lshl_add_u32 v92, v93, 3, v92
    v_add_u32 v92, s40, v92
    """)
    for j in range(4):
        A(f"ds_read_b64_tr_b16 {vr(96+2*j,2)}, v92 offset:{512*j}")
    A("s_waitcnt lgkmcnt(4)")
    for sl in range(3):
        for i in range(0, 16, 2):
            A(f"v_pk_add_f32 {vr(ACC+i,2)}, {vr(ACC+i,2)}, {vr(24+16*sl+i,2)}")
    A(f"s_mov_b32 s40, {LOG2E:#x}")
    for i in range(16): A(f"v_mul_f32 v{24+i}, s40, v{ACC+i}")
    for i in range(16): A(f"v_exp_f32 v{24+i}, -v{24+i}")
    for i in range(16): A(f"v_add_f32 v{24+i}, 1.0, v{24+i}")
    for i in range(16): A(f"v_rcp_f32 v{24+i}, v{24+i}")
    for i in range(16): A(f"v_mul_f32 v{ACC+i}, v{ACC+i}, v{24+i}")
    A("s_waitcnt lgkmcnt(0)")
    for j in range(4):
        for hlf in range(2):
            sreg = 96+2*j+hlf; xreg = 72+2*j+hlf; g0 = ACC+4*j+2*hlf
            A(f"v_lshlrev_b32 v40, 16, v{sreg}")
            A(f"v_and_b32 v41, 0xffff0000, v{sreg}")
            A(f"v_lshlrev_b32 v42, 16, v{xreg}")
            A(f"v_and_b32 v43, 0xffff0000, v{xreg}")
            A(f"v_fmac_f32 v42, v40, v{g0}")
            A(f"v_fmac_f32 v43, v41, v{g0+1}")
            A(f"v_cvt_pk_bf16_f32 v{44+2*j+hlf}, v42, v43")
        A(f"buffer_store_dwordx2 {vr(44+2*j,2)}, v6, s[28:31], s42 offen offset:{16*j}")
```

```python
from asmlib import *
KG_LDS_TILE = 16*272
KG_TAB = 4*KG_LDS_TILE
KG_LDS = KG_TAB + 720*4
def kg_role(A, s_ch, lds0=0):
    A(f"""
    s_load_dwordx4 s[4:7], s[0:1], {KA['logA']}
    s_load_dwordx4 s[8:11], s[0:1], {KA['Cre']}
    s_load_dwordx4 s[12:15], s[0:1], {KA['logdt']}
    s_load_dwordx2 s[16:17], s[0:1], {KA['ws']}
    v_and_b32 v1, 63, v0
    v_lshrrev_b32 v2, 6, v0
    s_lshl_b32 s18, {s_ch}, 9
    v_lshlrev_b32 v3, 1, v0
    v_add_u32 v3, s18, v3
    s_lshl_b32 s19, {s_ch}, 1
    s_and_b32 s19, s19, 0xfffffffc
    s_waitcnt lgkmcnt(0)
    """)
    srd(A, 20, 4, 448*512); srd(A, 24, 6, 448*512); srd(A, 28, 8, 448*512); srd(A, 32, 10, 448*512)
    A(f"""
    buffer_load_ushort v4, v3, s[20:23], 0 offen
    buffer_load_ushort v5, v3, s[24:27], 0 offen
    buffer_load_ushort v6, v3, s[28:31], 0 offen
    buffer_load_ushort v7, v3, s[32:35], 0 offen
    s_load_dword s36, s[12:13], s19
    s_load_dword s37, s[14:15], s19
    """)
    srd(A, 40, 16, 448*4096, off=WS_K if WS_K else None)
    A(f"""
    v_mov_b32 v8, 0
    v_lshlrev_b32 v9, 2, v0
    ds_write_b32 v9, v8 offset:{lds0+KG_TAB}
    ds_write_b32 v9, v8 offset:{lds0+KG_TAB+1024}
    """)
    A(f"""
    v_cmp_gt_u32 vcc, 208, v0
    s_and_saveexec_b64 s[38:39], vcc
    ds_write_b32 v9, v8 offset:{lds0+KG_TAB+2048}
    s_mov_b64 exec, s[38:39]
    """)
    A(f"""
    v_mov_b32 v10, 0
    v_cmp_le_u32 vcc, 32, v0
    v_lshlrev_b32 v14, 3, v0
    v_addc_co_u32 v10, vcc, 0, v10, vcc
    v_cmp_le_u32 vcc, 64, v0
    s_nop 1
    v_addc_co_u32 v10, vcc, 0, v10, vcc
    v_cmp_le_u32 vcc, 128, v0
    s_nop 1
    v_addc_co_u32 v10, vcc, 0, v10, vcc
    v_mov_b32 v15, 1
    v_lshlrev_b32 v11, v10, v15
    v_lshrrev_b32 v11, 1, v11
    v_min_u32 v12, 1, v10
    v_sub_u32 v11, v11, v12
    v_lshlrev_b32 v13, 9, v10
    v_add_u32 v13, {lds0+KG_TAB}, v13
    """)
    for e in range(8):
        A(f"""
        v_add_u32 v15, {e}, v14
        v_lshrrev_b32 v16, v10, v15
        v_and_b32 v16, v16, v12
        v_add3_u32 v15, v15, v11, v16
        v_lshrrev_b32 v15, v10, v15
        v_lshl_add_u32 v{100+e}, v15, 2, v13
        """)
    A(f"""
    v_mul_u32_u24 v19, {KG_LDS_TILE}, v2
    v_add_u32 v19, {lds0}, v19
    v_lshl_add_u32 v17, v1, 2, v19
    v_and_b32 v20, 15, v1
    v_lshrrev_b32 v21, 4, v1
    v_mul_u32_u24 v18, 272, v20
    v_add_u32 v18, v18, v19
    v_lshl_add_u32 v18, v21, 4, v18
    """)
    A(f"""
    v_and_b32 v22, 1, v21
    v_lshrrev_b32 v23, 1, v21
    v_lshlrev_b32 v24, 5, v20
    v_lshl_add_u32 v24, v22, 4, v24
    v_lshl_add_u32 v24, v23, 9, v24
    v_add_u32 v90, {lds0+KG_TAB}, v24
    """)
    A(f"""
    v_lshlrev_b32 v24, 4, v20
    v_lshl_add_u32 v24, v21, 8, v24
    v_add_u32 v24, {lds0+KG_TAB+1024}, v24
    v_lshlrev_b32 v25, 3, v20
    v_lshl_add_u32 v25, v21, 8, v25
    v_add_u32 v25, {lds0+KG_TAB+1536-512}, v25
    v_cmp_gt_u32 vcc, 2, v21
    v_add_u32 v26, 8, v24
    v_add_u32 v27, 128, v25
    v_cndmask_b32 v91, v25, v24, vcc
    v_cndmask_b32 v92, v27, v26, vcc
    """)
    A(f"""
    v_lshlrev_b32 v24, 2, v20
    v_lshl_add_u32 v25, v21, 8, v24
    v_add_u32 v25, {lds0+KG_TAB+2048}, v25
    v_add_u32 v26, {lds0+KG_TAB+672*4}, v24
    v_cmp_gt_u32 vcc, 3, v21
    s_nop 1
    v_cndmask_b32 v93, v26, v25, vcc
    v_cmp_gt_u32 vcc, 2, v21
    v_add_u32 v27, 64, v25
    s_nop 0
    v_cndmask_b32 v94, v26, v27, vcc
    """)
    A(f"""
    s_waitcnt lgkmcnt(0)
    s_and_b32 s44, {s_ch}, 1
    s_lshl_b32 s44, s44, 4
    s_lshr_b32 s36, s36, s44
    s_lshl_b32 s36, s36, 16
    s_lshr_b32 s37, s37, s44
    s_lshl_b32 s37, s37, 16
    s_mov_b32 s45, {LOG2E:#x}
    s_mov_b32 s46, {INV2PI:#x}
    v_mov_b32 v28, s36
    v_mul_f32 v28, s45, v28
    v_exp_f32 v28, v28
    s_nop 0
    v_cvt_pk_bf16_f32 v28, v28, v28
    v_and_b32 v28, 0xffff0000, v28
    s_waitcnt vmcnt(0)
    v_lshlrev_b32 v4, 16, v4
    v_lshlrev_b32 v5, 16, v5
    v_lshlrev_b32 v6, 16, v6
    v_lshlrev_b32 v7, 16, v7
    v_mul_f32 v4, s45, v4
    v_exp_f32 v4, v4
    v_mul_f32 v5, v28, v5
    v_cvt_pk_bf16_f32 v4, v4, v4
    v_and_b32 v4, 0xffff0000, v4
    v_mul_f32 v4, v28, v4
    v_mul_f32 v4, s45, v4
    v_mul_f32 v5, s46, v5
    v_add_f32 v28, v28, v28
    v_mul_f32 v30, v28, v6
    v_mul_f32 v31, v28, v7
    """)
    def cis(dst, p, conj=False):
        A(f"""
        v_mul_f32 v8, {float(-p)}, v4
        v_mul_f32 v9, {float(p)}, v5
        v_exp_f32 v8, v8
        v_fract_f32 v9, v9
        s_nop 0
        v_cos_f32 v10, v9
        v_sin_f32 v11, v9
        s_nop 0
        v_mul_f32 v{dst}, v8, v10
        v_mul_f32 v{dst+1}, {'-' if conj else ''}v8, v11
        """.replace("-1.0, v4", "-1.0, v4"))
    def lit(x):
        import struct
        return hex(struct.unpack("<I", struct.pack("<f", x))[0])
    def cis2(dst, p, conj=False):
        A(f"v_mul_f32 v8, {lit(-float(p))}, v4")
        A(f"v_mul_f32 v9, {lit(float(p))}, v5")
        A(f"v_exp_f32 v8, v8")
        A(f"v_fract_f32 v9, v9")
        A(f"s_nop 0")
        A(f"v_cos_f32 v10, v9")
        A(f"v_sin_f32 v11, v9")
        A(f"s_nop 0")
        A(f"v_mul_f32 v{dst}, v8, v10")
        if conj: A(f"v_mul_f32_e64 v{dst+1}, -v8, v11")
        else: A(f"v_mul_f32 v{dst+1}, v8, v11")
    Z = {1:32, 2:34, 3:36, 4:38, 5:40, 6:42, 7:44}
    V = 46
    W = {r: 48 + 2*(r-1) for r in range(1, 9)}
    T = 64
    cis2(W[1], 8, conj=True)
    cis2(Z[1], 1)
    cis2(V, 128)
    def put(slot, pair):
        A(f"v_cvt_pk_bf16_f32 v12, v{pair}, v{pair+1}")
        A(f"ds_write_b32 v17, v12 offset:{slot*272}")
    tog = [0]
    def putr(slot, pair):
        r = 12 + (tog[0] % 4); tog[0] += 1
        A(f"v_cvt_pk_bf16_f32 v{r}, v{pair}, v{pair+1}")
        A(f"ds_write_b32 v17, v{r} offset:{slot*272}")
    A("v_mov_b32 v12, 0x00003f80")
    A("ds_write_b32 v17, v12 offset:0")
    putr(1, W[1])
    cmul(A, W[2], W[1], W[1]); cmul(A, Z[2], Z[1], Z[1]); putr(2, W[2])
    cmul(A, W[3], W[2], W[1]); cmul(A, W[4], W[2], W[2]); cmul(A, Z[3], Z[2], Z[1]); cmul(A, Z[4], Z[2], Z[2])
    putr(3, W[3]); putr(4, W[4])
    cmul(A, W[5], W[4], W[1]); cmul(A, W[6], W[4], W[2]); cmul(A, W[7], W[4], W[3]); cmul(A, W[8], W[4], W[4])
    putr(5, W[5]); putr(6, W[6]); putr(7, W[7]); putr(8, W[8])
    for r in range(9, 16):
        t = T + 2*(r % 4)
        cmul(A, t, W[8], W[r-8]); putr(r, t)
    cmul(A, Z[5], Z[4], Z[1]); cmul(A, Z[6], Z[4], Z[2]); cmul(A, Z[7], Z[4], Z[3])
    BF = 72
    A("s_waitcnt lgkmcnt(0)")
    for k in range(4):
        A(f"ds_read_b128 {vr(BF+4*k,4)}, v18 offset:{64*k}")
    C = [30, 48]
    cpair = {0: 30}
    nxt = [48, 50, 52, 54, 56, 58, 60, 62]
    def chain(k):
        dst = nxt[k % 8]
        cmul(A, dst, cpair[k-1], V)
        cpair[k] = dst
    AF = 108
    ACC = {0: 124, 1: 128, 2: 132}
    def tile_mfma(ti):
        A("s_waitcnt lgkmcnt(0)")
        for k in range(4):
            A(f"ds_read_b128 {vr(AF+4*k,4)}, v18 offset:{64*k}")
    def tile_mfma2(ti):
        for k in range(4):
            A(f"s_waitcnt lgkmcnt({3-k})")
            c = "0" if k == 0 else vr(ACC[ti],4)
            A(f"v_mfma_f32_16x16x32_bf16 {vr(ACC[ti],4)}, {vr(AF+4*k,4)}, {vr(BF+4*k,4)}, {c}")
    putr(0, cpair[0])
    chain(1)
    for ph in range(1, 8):
        t = T + 2*(ph % 4); cmul(A, t, cpair[0], Z[ph]); putr(ph, t)
    putr(8, cpair[1])
    chain(2)
    for ph in range(1, 8):
        t = T + 2*(ph % 4); cmul(A, t, cpair[1], Z[ph]); putr(8+ph, t)
    tile_mfma(0)
    chain(3)
    putr(0, cpair[2])
    for j, ph in enumerate((2, 4, 6)):
        t = T + 2*(j % 4); cmul(A, t, cpair[2], Z[ph]); putr(1+j, t)
    chain(4)
    putr(4, cpair[3])
    for j, ph in enumerate((2, 4, 6)):
        t = T + 2*(j % 4); cmul(A, t, cpair[3], Z[ph]); putr(5+j, t)
    A("s_waitcnt lgkmcnt(8)")
    for k in range(4):
        c = "0" if k == 0 else vr(ACC[0],4)
        A(f"v_mfma_f32_16x16x32_bf16 {vr(ACC[0],4)}, {vr(AF+4*k,4)}, {vr(BF+4*k,4)}, {c}")
    for k in range(4):
        if 4+k < 7: chain(5+k)
        else: chain(8)
        putr(8+2*k, cpair[4+k])
        t = T + 2*(k % 4); cmul(A, t, cpair[4+k], Z[4]); putr(9+2*k, t)
    tile_mfma(1)
    putr(0, cpair[8])
    for k in range(9, 17):
        chain(k); putr(k-8, cpair[k])
    A("s_waitcnt lgkmcnt(9)")
    for k in range(4):
        c = "0" if k == 0 else vr(ACC[1],4)
        A(f"v_mfma_f32_16x16x32_bf16 {vr(ACC[1],4)}, {vr(AF+4*k,4)}, {vr(BF+4*k,4)}, {c}")
    tile_mfma(2)
    A("s_barrier")
    for i in range(4):
        A(f"ds_add_f32 v90, v{ACC[0]+i} offset:{4*i}")
    A(f"ds_add_f32 v91, v{ACC[1]+0}")
    A(f"ds_add_f32 v91, v{ACC[1]+1} offset:4")
    A(f"ds_add_f32 v92, v{ACC[1]+2}")
    A(f"ds_add_f32 v92, v{ACC[1]+3} offset:4")
    A("s_waitcnt lgkmcnt(8)")
    for k in range(4):
        c = "0" if k == 0 else vr(ACC[2],4)
        A(f"v_mfma_f32_16x16x32_bf16 {vr(ACC[2],4)}, {vr(AF+4*k,4)}, {vr(BF+4*k,4)}, {c}")
    A("s_nop 7")
    A("s_nop 1")
    A(f"ds_add_f32 v93, v{ACC[2]+0}")
    A(f"ds_add_f32 v94, v{ACC[2]+1}")
    A(f"ds_add_f32 v94, v{ACC[2]+2} offset:64")
    A(f"ds_add_f32 v94, v{ACC[2]+3} offset:128")
    A("s_waitcnt lgkmcnt(0)")
    A("s_barrier")
    for e in range(8):
        A(f"ds_read_b32 v{108+e}, v{100+e}")
    A(f"""
    v_cmp_eq_u32 vcc, 0, v0
    v_mov_b32 v8, s37
    s_nop 0
    v_cndmask_b32 v8, 0, v8, vcc
    s_lshl_b32 s18, {s_ch}, 12
    v_lshlrev_b32 v9, 4, v0
    v_add_u32 v9, s18, v9
    s_waitcnt lgkmcnt(0)
    v_add_f32 v108, v108, v8
    v_cvt_pk_bf16_f32 v108, v108, v109
    v_cvt_pk_bf16_f32 v109, v110, v111
    v_cvt_pk_bf16_f32 v110, v112, v113
    v_cvt_pk_bf16_f32 v111, v114, v115
    buffer_store_dwordx4 v[108:111], v9, s[40:43], 0 offen
    """)
```

```python
from asmlib import *
LN_S = 224
LN_WAVE = 32*LN_S
LN_LDS = 4*LN_WAVE + 4*64*8
def ln_role(A, s_tt, lds0=0):
    A(f"""
    s_load_dwordx2 s[4:5], s[0:1], {KA['u']}
    s_load_dwordx2 s[6:7], s[0:1], {KA['ws']}
    v_and_b32 v1, 63, v0
    v_lshrrev_b32 v2, 6, v0
    v_and_b32 v3, 31, v1
    v_lshrrev_b32 v4, 5, v1
    v_readfirstlane_b32 s8, v2
    s_mul_i32 s9, {s_tt}, {32*896}
    v_mul_u32_u24 v5, 896, v3
    v_lshl_add_u32 v5, v4, 4, v5
    s_mul_i32 s10, s8, 224
    s_add_u32 s9, s9, s10
    s_waitcnt lgkmcnt(0)
    """)
    srd(A, 12, 4, 2048*896)
    srd(A, 16, 6, 64*28*1024, off=WS_XF)
    srd(A, 20, 6, 448*4096, off=WS_XT)
    for k in range(7):
        A(f"buffer_load_dwordx4 {vr(8+4*k,4)}, v5, s[12:15], s9 offen offset:{32*k}")
    A("v_mov_b32 v36, 0\nv_mov_b32 v37, 0\nv_mov_b32 v38, 0\nv_mov_b32 v39, 0")
    for k in range(7):
        A(f"s_waitcnt vmcnt({6-k})")
        for j in range(4):
            src = 8+4*k+j; lo = 40+8*k+2*j; hi = lo+1
            A(f"v_lshlrev_b32 v{lo}, 16, v{src}")
            A(f"v_and_b32 v{hi}, 0xffff0000, v{src}")
            A(f"v_add_f32 v36, v36, v{lo}")
            A(f"v_add_f32 v37, v37, v{hi}")
            A(f"v_fmac_f32 v38, v{lo}, v{lo}")
            A(f"v_fmac_f32 v39, v{hi}, v{hi}")
    A(f"""
    v_add_f32 v36, v36, v37
    v_add_f32 v37, v38, v39
    v_lshlrev_b32 v6, 3, v1
    v_lshl_add_u32 v6, v2, 9, v6
    v_add_u32 v6, {lds0 + 4*LN_WAVE}, v6
    ds_write_b64 v6, v[36:37]
    s_waitcnt lgkmcnt(0)
    s_barrier
    v_lshlrev_b32 v6, 3, v3
    v_add_u32 v6, {lds0 + 4*LN_WAVE}, v6
    """)
    for w in range(4):
        A(f"ds_read_b64 {vr(8+4*w,2)}, v6 offset:{512*w}")
        A(f"ds_read_b64 {vr(10+4*w,2)}, v6 offset:{512*w+256}")
    A("s_waitcnt lgkmcnt(0)")
    A("""
    v_pk_add_f32 v[8:9], v[8:9], v[10:11]
    v_pk_add_f32 v[12:13], v[12:13], v[14:15]
    v_pk_add_f32 v[16:17], v[16:17], v[18:19]
    v_pk_add_f32 v[20:21], v[20:21], v[22:23]
    v_pk_add_f32 v[8:9], v[8:9], v[12:13]
    v_pk_add_f32 v[16:17], v[16:17], v[20:21]
    v_pk_add_f32 v[8:9], v[8:9], v[16:17]
    s_mov_b32 s24, 0x3b124925
    v_mul_f32 v8, s24, v8
    v_mul_f32 v9, s24, v9
    v_fma_f32 v9, -v8, v8, v9
    v_max_f32 v9, 0, v9
    v_cvt_pk_bf16_f32 v10, v8, v9
    v_and_b32 v11, 0xffff0000, v10
    v_lshlrev_b32 v10, 16, v10
    v_add_f32 v11, 0x3727c5ac, v11
    v_cvt_pk_bf16_f32 v11, v11, v11
    v_and_b32 v11, 0xffff0000, v11
    v_sqrt_f32 v11, v11
    s_nop 0
    v_cvt_pk_bf16_f32 v11, v11, v11
    v_and_b32 v11, 0xffff0000, v11
    v_rcp_f32 v11, v11
    s_nop 0
    v_mul_f32 v12, v10, v11
    """)
    A(f"""
    v_mul_u32_u24 v13, {LN_WAVE}, v2
    v_mul_u32_u24 v15, {LN_S}, v3
    v_add_u32 v13, v13, v15
    v_lshl_add_u32 v13, v4, 4, v13
    v_add_u32 v13, {lds0}, v13
    v_lshlrev_b32 v14, 4, v1
    s_mul_i32 s25, {s_tt}, 28
    s_mul_i32 s26, s8, 7
    s_add_u32 s25, s25, s26
    s_lshl_b32 s25, s25, 10
    """)
    for k in range(7):
        d = 8 + 4*(k % 2) + 16
        for j in range(4):
            lo = 40+8*k+2*j; hi = lo+1
            A(f"v_fma_f32 v{lo}, v{lo}, v11, -v12")
            A(f"v_fma_f32 v{hi}, v{hi}, v11, -v12")
            A(f"v_cvt_pk_bf16_f32 v{96+4*k+j}, v{lo}, v{hi}")
        A(f"buffer_store_dwordx4 {vr(96+4*k,4)}, v14, s[16:19], s25 offen offset:{1024*k if k < 4 else 0}" if k < 4 else
          f"buffer_store_dwordx4 {vr(96+4*k,4)}, v14, s[16:19], s27 offen offset:{1024*(k-4)}")
        if k == 3: A("s_add_u32 s27, s25, 4096")
        A(f"ds_write_b128 v13, {vr(96+4*k,4)} offset:{32*k}")
    A(f"""
    v_lshrrev_b32 v15, 4, v1
    v_and_b32 v16, 15, v1
    v_lshrrev_b32 v17, 2, v16
    v_and_b32 v18, 3, v16
    v_lshl_add_u32 v17, v15, 3, v17
    v_mul_u32_u24 v17, {LN_S}, v17
    v_lshl_add_u32 v17, v18, 3, v17
    v_mul_u32_u24 v19, {LN_WAVE}, v2
    v_add_u32 v17, v17, v19
    v_add_u32 v17, {lds0}, v17
    v_lshlrev_b32 v20, 12, v16
    v_lshl_add_u32 v20, v15, 4, v20
    s_mul_i32 s28, s8, {112*4096}
    s_lshl_b32 s29, {s_tt}, 6
    s_add_u32 s28, s28, s29
    s_waitcnt lgkmcnt(0)
    """)
    for c in range(7):
        r = 40 + 4*c
        A(f"ds_read_b64_tr_b16 {vr(r,2)}, v17 offset:{32*c}")
        A(f"ds_read_b64_tr_b16 {vr(r+2,2)}, v17 offset:{32*c + 4*LN_S}")
    for c in range(7):
        A(f"s_waitcnt lgkmcnt({2*(6-c)})")
        A(f"buffer_store_dwordx4 {vr(40+4*c,4)}, v20, s[20:23], s28 offen")
        A(f"s_add_u32 s28, s28, {16*4096}")

WR_LDS = 4*1024
def wr_role(A, s_task, lds0=0):
    A(f"""
    s_load_dwordx2 s[4:5], s[0:1], {KA['w1']}
    s_load_dwordx2 s[6:7], s[0:1], {KA['w2']}
    s_load_dwordx2 s[8:9], s[0:1], {KA['ws']}
    v_and_b32 v1, 63, v0
    v_lshrrev_b32 v2, 6, v0
    s_nop 0
    v_readfirstlane_b32 s10, v2
    s_nop 3
    s_lshl_b32 s11, {s_task}, 2
    s_add_u32 s11, s11, s10
    s_waitcnt lgkmcnt(0)
    """)
    Lw2 = A.label("Lwr_w2"); Lgo = A.label("Lwr_go")
    A(f"""
    s_cmp_ge_u32 s11, 224
    s_cbranch_scc1 {Lw2}
    """)
    srd(A, 12, 4, 448*3584); srd(A, 16, 8, 56*28*1024, off=WS_W1F)
    A(f"""
    s_lshr_b32 s20, s11, 3
    s_and_b32 s21, s11, 7
    s_mov_b32 s22, 3584
    s_mul_i32 s23, s20, {16*3584}
    s_mul_i32 s24, s21, {7*64}
    s_add_u32 s23, s23, s24
    s_mul_i32 s25, s21, {7*28}
    s_add_u32 s25, s25, s20
    s_lshl_b32 s25, s25, 10
    s_mov_b32 s26, {28*1024}
    s_mov_b32 s27, 8
    s_mov_b32 s28, 4
    s_branch {Lgo}
    {Lw2}:
    """)
    srd(A, 12, 6, 1792*896); srd(A, 16, 8, 14*112*1024, off=WS_W2F)
    A(f"""
    s_sub_u32 s11, s11, 224
    s_lshr_b32 s20, s11, 1
    s_and_b32 s21, s11, 1
    s_mov_b32 s22, 896
    s_mul_i32 s23, s20, {16*896}
    s_mul_i32 s24, s21, {7*64}
    s_add_u32 s23, s23, s24
    s_mul_i32 s25, s21, {7*112}
    s_add_u32 s25, s25, s20
    s_lshl_b32 s25, s25, 10
    s_mov_b32 s26, {112*1024}
    s_mov_b32 s27, 4
    s_mov_b32 s28, 8
    {Lgo}:
    """)
    A(f"""
    v_lshrrev_b32 v3, 2, v1
    v_and_b32 v4, 3, v1
    v_mul_lo_u32 v5, s22, v3
    v_lshl_add_u32 v5, v4, 4, v5
    """)
    for j in range(7):
        A(f"buffer_load_dwordx4 {vr(8+4*j,4)}, v5, s[12:15], s23 offen offset:{64*j}")
    A(f"""
    v_lshlrev_b32 v6, 10, v2
    v_add_u32 v6, {lds0}, v6
    v_lshl_add_u32 v7, v1, 4, v6
    v_lshrrev_b32 v40, 4, v1
    v_and_b32 v41, 15, v1
    v_lshrrev_b32 v42, 2, v41
    v_and_b32 v43, 3, v41
    v_and_b32 v44, 1, v40
    v_lshrrev_b32 v45, 1, v40
    v_mul_lo_u32 v45, s27, v45
    v_add_u32 v45, v45, v42
    v_lshl_add_u32 v46, v45, 6, v6
    v_lshl_add_u32 v46, v44, 5, v46
    v_lshl_add_u32 v46, v43, 3, v46
    s_lshl_b32 s28, s28, 6
    v_add_u32 v47, s28, v46
    v_lshlrev_b32 v48, 4, v1
    """)
    for j in range(7):
        A(f"s_waitcnt vmcnt({6-j if j == 0 else 6})" if False else f"s_waitcnt vmcnt({6})" if j > 0 else "s_waitcnt vmcnt(6)")
        A(f"ds_write_b128 v7, {vr(8+4*j,4)}")
        r = 52 + 4*(j % 2)
        A(f"ds_read_b64_tr_b16 {vr(r,2)}, v46")
        A(f"ds_read_b64_tr_b16 {vr(r+2,2)}, v47")
        A("s_waitcnt lgkmcnt(0)")
        A(f"buffer_store_dwordx4 {vr(r,4)}, v48, s[16:19], s25 offen")
        A("s_add_u32 s25, s25, s26")
```

```python
from build_test import *
import kg, cv, prep, gemm
def k0(A):
    A("""
    s_cmp_lt_u32 s2, 64
    s_cbranch_scc1 L0_ln
    s_cmp_lt_u32 s2, 176
    s_cbranch_scc1 L0_wr
    s_cmp_ge_u32 s2, 624
    s_cbranch_scc1 L0_end
    s_sub_u32 s48, s2, 176
    """)
    kg.kg_role(A, "s48")
    A("s_endpgm")
    A("L0_ln:")
    A("s_mov_b32 s48, s2")
    prep.ln_role(A, "s48")
    A("s_endpgm")
    A("L0_wr:")
    A("s_sub_u32 s48, s2, 64")
    prep.wr_role(A, "s48")
    A("L0_end:")
    A("s_endpgm")
def k1(A):
    A("""
    s_cmp_lt_u32 s2, 224
    s_cbranch_scc1 L1_g1
    s_cmp_ge_u32 s2, 448
    s_cbranch_scc1 L1_end
    s_sub_u32 s48, s2, 224
    """)
    cv.cv_role(A, "s48")
    A("s_endpgm")
    A("L1_g1:")
    A("s_mov_b32 s48, s2")
    gemm.g1_role(A, "s48")
    A("L1_end:")
    A("s_endpgm")
def k2(A):
    A("""
    s_cmp_ge_u32 s2, 224
    s_cbranch_scc1 L2_end
    s_mov_b32 s48, s2
    """)
    gemm.g2_role(A, "s48")
    A("L2_end:")
    A("s_endpgm")
lds0 = max(kg.KG_LDS, prep.LN_LDS, prep.WR_LDS)
build([("p0_kernel", 624, 256, lds0), ("p1_kernel", 448, 256, max(gemm.G1_LDS, cv.CV_LDS)), ("p2_kernel", 224, 256, gemm.G2_LDS)],
      {"p0_kernel": (k0, 136), "p1_kernel": (k1, 248), "p2_kernel": (k2, 168)}, "full3.s")
```

```python
class Asm:
    def __init__(self):
        self.lines = []
        self.nlab = 0
    def __call__(self, s):
        for l in s.strip("\n").split("\n"):
            self.lines.append("    " + l.strip() if not l.strip().endswith(":") else l.strip())
    def label(self, base="L"):
        self.nlab += 1
        return f"{base}_{self.nlab}"
    def raw(self, s):
        self.lines.append(s)
    def text(self):
        return "\n".join(self.lines) + "\n"

def vr(a, n=1):
    return f"v{a}" if n == 1 else f"v[{a}:{a+n-1}]"
def sr(a, n=1):
    return f"s{a}" if n == 1 else f"s[{a}:{a+n-1}]"
def ar(a, n=1):
    return f"a{a}" if n == 1 else f"a[{a}:{a+n-1}]"

def srd(A, s, base, nbytes, off=None):
    if off:
        A(f"s_add_u32 s{s}, s{base}, {off}")
        A(f"s_addc_u32 s{s+1}, s{base+1}, 0")
    else:
        A(f"s_mov_b32 s{s}, s{base}")
        A(f"s_mov_b32 s{s+1}, s{base+1}")
    A(f"s_mov_b32 s{s+2}, {nbytes}")
    A(f"s_mov_b32 s{s+3}, 0x00020000")

def cmul(A, R, X, Y):
    A(f"v_pk_mul_f32 {vr(R,2)}, {vr(X,2)}, {vr(Y,2)} op_sel:[0,0] op_sel_hi:[0,1]")
    A(f"v_pk_fma_f32 {vr(R,2)}, {vr(X,2)}, {vr(Y,2)}, {vr(R,2)} op_sel:[1,1,0] op_sel_hi:[1,0,1] neg_lo:[0,1,0]")

def kernel_head(name):
    return f""".globl {name}
.p2align 8
.type {name},@function
{name}:
"""
def kernel_desc(name, vgpr, sgpr=102, accum=None, ydim=False):
    accum = accum if accum is not None else (vgpr + 3)//4*4
    return f""".amdhsa_kernel {name}
  .amdhsa_next_free_vgpr {vgpr}
  .amdhsa_next_free_sgpr {sgpr}
  .amdhsa_accum_offset {accum}
  .amdhsa_group_segment_fixed_size 0
  .amdhsa_kernarg_size 112
  .amdhsa_user_sgpr_count 2
  .amdhsa_user_sgpr_kernarg_segment_ptr 1
  .amdhsa_system_sgpr_workgroup_id_x 1
.end_amdhsa_kernel
"""
KA = dict(u=0, logA=8, Aim=16, Cre=24, Cim=32, logdt=40, Dskip=48, Bx=56, w1=64, b1=72, w2=80, out=88, dbg=96, ws=104)
L_, D_, F_ = 2048, 448, 1792
WS_K   = 0
WS_XT  = WS_K + 448*4096
WS_ST  = WS_XT + 448*4096
WS_XF  = WS_ST + 448*4096
WS_W1F = WS_XF + 64*28*1024
WS_W2F = WS_W1F + 56*28*1024
WS_HF  = WS_W2F + 14*112*1024
WS_END = WS_HF + 64*112*1024
WS_FLAG = WS_END + 2048
LOG2E = 0x3fb8aa3b
INV2PI = 0x3e22f983

MARK=[None]
def mark(A,i,wait=True):
    if MARK[0]: MARK[0](A,i)
```

```python
from asmlib import *
CV_COPY = 4160
CV_U = 4*CV_COPY
CV_CH = CV_U + 512 + 4096
CV_LDS = 2*CV_CH
def cv_role(A, s_blk, lds0=0, post=None):
    A(f"""
    s_load_dwordx2 s[4:5], s[0:1], {KA['ws']}
    v_and_b32 v1, 63, v0
    v_lshrrev_b32 v2, 6, v0
    s_nop 0
    v_readfirstlane_b32 s6, v2
    s_nop 3
    s_lshr_b32 s7, s6, 1
    s_and_b32 s6, s6, 1
    s_lshl_b32 s8, {s_blk}, 1
    s_add_u32 s8, s8, s7
    s_lshl_b32 s9, s8, 12
    s_mul_i32 s10, s7, {CV_CH}
    s_add_u32 s10, s10, {lds0}
    s_waitcnt lgkmcnt(0)
    """)
    def chan_srd(s, off):
        A(f"s_add_u32 s{s}, s4, s9")
        A(f"s_addc_u32 s{s+1}, s5, 0")
        if off:
            A(f"s_add_u32 s{s}, s{s}, {off}")
            A(f"s_addc_u32 s{s+1}, s{s+1}, 0")
        A(f"s_mov_b32 s{s+2}, 4096")
        A(f"s_mov_b32 s{s+3}, 0x00020000")
    chan_srd(12, WS_K); chan_srd(16, WS_XT); chan_srd(20, WS_ST)
    A(f"""
    s_lshl_b32 s11, s6, 6
    v_add_u32 v3, s11, v1
    v_lshlrev_b32 v4, 4, v3
    v_subrev_u32 v5, 8, v4
    buffer_load_dwordx4 v[8:11], v4, s[12:15], 0 offen
    buffer_load_dwordx2 v[12:13], v5, s[12:15], 0 offen
    buffer_load_dwordx4 v[16:19], v4, s[12:15], 0 offen offset:2048
    buffer_load_dwordx2 v[20:21], v4, s[12:15], 0 offen offset:2040
    buffer_load_dwordx4 v[24:27], v4, s[16:19], 0 offen
    buffer_load_dwordx4 v[28:31], v4, s[16:19], 0 offen offset:2048
    """)
    A(f"""
    v_mov_b32 v32, 0
    v_mov_b32 v33, 0
    v_mov_b32 v34, 0
    v_mov_b32 v35, 0
    v_lshlrev_b32 v6, 4, v1
    v_add_u32 v6, s10, v6
    v_cmp_gt_u32 vcc, 32, v1
    s_and_saveexec_b64 s[24:25], vcc
    ds_write_b128 v6, v[32:35] offset:{CV_U}
    s_mov_b64 exec, s[24:25]
    v_lshrrev_b32 v7, 1, v1
    v_mul_u32_u24 v7, {CV_COPY}, v7
    v_and_b32 v36, 1, v1
    v_lshl_add_u32 v7, v36, 4, v7
    v_add_u32 v7, s10, v7
    v_cmp_gt_u32 vcc, 8, v1
    s_and_saveexec_b64 s[24:25], vcc
    ds_write_b128 v7, v[32:35]
    s_mov_b64 exec, s[24:25]
    """)
    A(f"""
    v_add_u32 v36, s10, v4
    v_add_u32 v37, {CV_U+512}, v36
    v_add_u32 v36, 32, v36
    """)
    A(f"""
    v_lshrrev_b32 v40, 4, v1
    v_and_b32 v41, 15, v1
    v_lshrrev_b32 v42, 2, v41
    v_and_b32 v43, 3, v41
    v_mul_u32_u24 v38, {CV_COPY}, v42
    v_lshl_add_u32 v38, v43, 3, v38
    v_lshlrev_b32 v44, 4, v40
    v_sub_u32 v38, v38, v44
    v_add_u32 v38, 56, v38
    v_add_u32 v38, s10, v38
    v_lshlrev_b32 v39, 5, v41
    v_add_u32 v39, v39, v44
    v_add_u32 v39, {CV_U + 512 - 32 - 448}, v39
    v_add_u32 v39, s10, v39
    """)
    A(f"""
    v_lshlrev_b32 v45, 5, v41
    v_lshl_add_u32 v45, v40, 3, v45
    """)
    def build(k0, p0, woff):
        a = 46
        A(f"v_alignbyte_b32 v{a}, v{p0+1}, v{p0}, 2")
        A(f"v_alignbyte_b32 v{a+1}, v{k0}, v{p0+1}, 2")
        A(f"v_alignbyte_b32 v{a+2}, v{k0+1}, v{k0}, 2")
        A(f"v_alignbyte_b32 v{a+3}, v{k0+2}, v{k0+1}, 2")
        A(f"v_alignbyte_b32 v{a+4}, v{k0+3}, v{k0+2}, 2")
        A(f"ds_write_b128 v36, {vr(k0,4)} offset:{woff}")
        A(f"v_mov_b32 v52, v{p0+1}")
        A(f"v_mov_b32 v53, v{k0}")
        A(f"v_mov_b32 v54, v{k0+1}")
        A(f"v_mov_b32 v55, v{k0+2}")
        A(f"ds_write_b128 v36, v[52:55] offset:{woff + 2*CV_COPY}")
        A(f"ds_write_b128 v36, v[46:49] offset:{woff + 3*CV_COPY}")
        A(f"v_mov_b32 v56, v47")
        A(f"v_mov_b32 v57, v48")
        A(f"v_mov_b32 v58, v49")
        A(f"v_mov_b32 v59, v50")
        A(f"ds_write_b128 v36, v[56:59] offset:{woff + 1*CV_COPY}")
    A("s_waitcnt vmcnt(4)")
    mark(A,0)
    build(8, 12, 0)
    A("s_waitcnt vmcnt(2)")
    build(16, 20, 2048)
    A("s_waitcnt vmcnt(0)")
    A("ds_write_b128 v37, v[24:27]")
    A("ds_write_b128 v37, v[28:31] offset:2048")
    A("s_waitcnt lgkmcnt(0)")
    mark(A,1)
    A("s_barrier")
    mark(A,2)
    ACC = 64; BR = 96; AR = 224; NA = 6
    Lp1 = A.label("Lcv_p1"); Lj = A.label("Lcv_join")
    A("s_cmp_eq_u32 s6, 1")
    A(f"s_cbranch_scc1 {Lp1}")
    def variant(D):
        for si, d in enumerate(D):
            for mu in range(8):
                A(f"ds_read_b128 {vr(BR + 32*si + 4*mu, 4)}, v39 offset:{512*d + 64*(7-mu)}")
        mmax = 8*(8 - D[0])
        def issueA(m):
            r = AR + 4*(m % NA)
            A(f"ds_read_b64_tr_b16 {vr(r,2)}, v38 offset:{64*m + 8}")
            A(f"ds_read_b64_tr_b16 {vr(r+2,2)}, v38 offset:{64*m}")
        LA = NA - 1
        for m in range(LA): issueA(m)
        touched = set()
        for m in range(mmax):
            mp, mu = divmod(m, 8)
            if m + LA < mmax:
                issueA(m + LA)
                A(f"s_waitcnt lgkmcnt({2*LA})")
            else:
                A(f"s_waitcnt lgkmcnt({2*(mmax-1-m)})")
            r = AR + 4*(m % NA)
            for si, d in enumerate(D):
                q = mp + d
                if q > 7: continue
                c = vr(ACC + 4*q, 4) if q in touched else "0"
                touched.add(q)
                A(f"v_mfma_f32_16x16x32_bf16 {vr(ACC+4*q,4)}, {vr(r,4)}, {vr(BR+32*si+4*mu,4)}, {c}")
        return touched
    t0 = variant([0, 3, 4, 7])
    assert t0 == set(range(8))
    A(f"s_branch {Lj}")
    A(f"{Lp1}:")
    A(f"v_mov_b32 v{ACC}, 0"); A(f"v_mov_b32 v{ACC+1}, 0"); A(f"v_mov_b32 v{ACC+2}, 0"); A(f"v_mov_b32 v{ACC+3}, 0")
    t1 = variant([1, 2, 5, 6])
    assert t1 == set(range(1, 8))
    A(f"{Lj}:")
    mark(A,3)
    A(f"""
    s_barrier
    s_lshl_b32 s11, s6, 12
    s_add_u32 s11, s11, s10
    v_lshlrev_b32 v6, 4, v1
    v_add_u32 v7, s11, v6
    s_xor_b32 s26, s6, 1
    s_lshl_b32 s26, s26, 12
    s_add_u32 s26, s26, s10
    v_add_u32 v6, s26, v6
    """)
    Le1 = A.label("Lcv_e1"); Le2 = A.label("Lcv_e2")
    A("s_cmp_eq_u32 s6, 1")
    A(f"s_cbranch_scc1 {Le1}")
    def fin(send, keep):
        for j, q in enumerate(send):
            A(f"ds_write_b128 v7, {vr(ACC+4*q,4)} offset:{1024*j}")
        A("s_waitcnt lgkmcnt(0)")
        A("s_barrier")
        for j in range(4):
            A(f"ds_read_b128 {vr(8+4*j,4)}, v6 offset:{1024*j}")
        for j, q in enumerate(keep):
            A(f"s_waitcnt lgkmcnt({3-j})")
            for i in range(4):
                A(f"v_add_f32 v{8+4*j+i}, v{8+4*j+i}, v{ACC+4*q+i}")
            A(f"v_cvt_pk_bf16_f32 v{8+4*j}, v{8+4*j}, v{8+4*j+1}")
            A(f"v_cvt_pk_bf16_f32 v{8+4*j+1}, v{8+4*j+2}, v{8+4*j+3}")
            A(f"buffer_store_dwordx2 {vr(8+4*j,2)}, v45, s[20:23], 0 offen offset:{512*q}" + (post or ""))
    fin([4,5,6,7], [0,1,2,3])
    A(f"s_branch {Le2}")
    A(f"{Le1}:")
    fin([0,1,2,3], [4,5,6,7])
    A(f"{Le2}:")
    mark(A,4)
```

```python
from asmlib import *
ST1 = ""
G1_SLOT = 16384; G1_NSLOT = 5
G1_LDS = G1_SLOT*G1_NSLOT
def mish8(A, regs, tmp):
    n = len(regs)
    T = [tmp+i for i in range(n)]; U = [tmp+n+i for i in range(n)]
    for i, r in enumerate(regs): A(f"v_mul_f32 v{T[i]}, s40, v{r}")
    for i in range(n): A(f"v_exp_f32 v{T[i]}, v{T[i]}")
    for i in range(n): A(f"v_add_f32 v{U[i]}, 2.0, v{T[i]}")
    for i in range(n): A(f"v_fma_f32 v{T[i]}, v{T[i]}, v{U[i]}, 2.0")
    for i in range(n): A(f"v_rcp_f32 v{T[i]}, v{T[i]}")
    for i in range(n): A(f"v_fma_f32 v{T[i]}, v{T[i]}, -2.0, 1.0")
    for i, r in enumerate(regs): A(f"v_mul_f32 v{r}, v{r}, v{T[i]}")

def g1_role(A, s_blk, lds0=0):
    A(f"""
    s_load_dwordx2 s[4:5], s[0:1], {KA['ws']}
    s_load_dwordx2 s[6:7], s[0:1], {KA['b1']}
    v_and_b32 v1, 63, v0
    v_lshrrev_b32 v2, 6, v0
    s_nop 0
    v_readfirstlane_b32 s8, v2
    s_and_b32 s9, {s_blk}, 15
    s_lshr_b32 s10, {s_blk}, 4
    s_waitcnt lgkmcnt(0)
    """)
    srd(A, 12, 4, 56*28*1024, off=WS_W1F)
    srd(A, 16, 4, 64*28*1024, off=WS_XF)
    srd(A, 20, 4, 64*112*1024, off=WS_HF)
    srd(A, 24, 6, 1792*2)
    A(f"""
    s_lshl_b32 s28, s10, 2
    s_add_u32 s28, s28, s8
    s_mul_i32 s28, s28, {28*1024}
    s_lshl_b32 s29, s9, 2
    s_add_u32 s29, s29, s8
    s_mul_i32 s29, s29, {28*1024}
    v_lshlrev_b32 v3, 4, v1
    s_lshl_b32 s30, s8, 11
    s_add_u32 s30, s30, {lds0}
    s_mov_b32 s40, {LOG2E:#x}
    """)
    def dma(slot_sreg):
        A(f"s_add_u32 m0, s30, {slot_sreg}")
        A("s_nop 0")
        A("buffer_load_dwordx4 v3, s[12:15], s28 offen lds")
        A("buffer_load_dwordx4 v3, s[12:15], s28 offen offset:1024 lds")
        A("s_add_u32 m0, m0, 8192")
        A("s_add_u32 s28, s28, 2048")
        A("buffer_load_dwordx4 v3, s[16:19], s29 offen lds")
        A("buffer_load_dwordx4 v3, s[16:19], s29 offen offset:1024 lds")
        A("s_add_u32 s29, s29, 2048")
    A(f"""
    s_and_b32 s32, s8, 1
    s_lshr_b32 s33, s8, 1
    s_lshl_b32 s34, s10, 8
    s_lshl_b32 s35, s32, 7
    s_add_u32 s34, s34, s35
    v_lshrrev_b32 v4, 5, v1
    v_lshlrev_b32 v4, 3, v4
    """)
    for a in range(2):
        for j in range(4):
            A(f"buffer_load_dwordx2 {vr(72+8*a+2*j,2)}, v4, s[24:27], s34 offen offset:{64*a+16*j}")
    for c in range(4):
        A(f"s_mov_b32 s31, {c*G1_SLOT}")
        dma("s31")
    ACC = 8
    A(f"""
    s_lshl_b32 s35, s32, 12
    s_add_u32 s35, s35, {lds0}
    v_add_u32 v5, s35, v3
    s_lshl_b32 s36, s33, 12
    s_add_u32 s36, s36, {lds0 + 8192}
    v_add_u32 v6, s36, v3
    s_waitcnt vmcnt(16)
    """)
    mark(A,0)
    for a in range(2):
        for j in range(4):
            s0 = 72+8*a+2*j
            for b in range(2):
                d = ACC + 32*a + 16*b + 4*j
                A(f"v_lshlrev_b32 v{d}, 16, v{s0}")
                A(f"v_and_b32 v{d+1}, 0xffff0000, v{s0}")
                A(f"v_lshlrev_b32 v{d+2}, 16, v{s0+1}")
                A(f"v_and_b32 v{d+3}, 0xffff0000, v{s0+1}")
    FR = 72
    A("s_mov_b32 s37, 0")
    A("s_mov_b32 s38, 0")
    A(f"s_mov_b32 s39, {4*G1_SLOT}")
    Ll = A.label("Lg1"); Lnd = A.label("Lg1nd"); Lw = A.label("Lg1w"); Lw2 = A.label("Lg1w2")
    mark(A,1)
    A(f"{Ll}:")
    A(f"""
    s_cmp_ge_u32 s37, 11
    s_cbranch_scc1 {Lw}
    s_waitcnt vmcnt(12)
    s_branch {Lw2}
    {Lw}:
    s_waitcnt vmcnt(0)
    {Lw2}:
    s_barrier
    v_add_u32 v7, s38, v5
    v_add_u32 v104, s38, v6
    """)
    for k in range(2):
        A(f"ds_read_b128 {vr(FR+16*k,4)}, v7 offset:{1024*k}")
        A(f"ds_read_b128 {vr(FR+16*k+8,4)}, v104 offset:{1024*k}")
        A(f"ds_read_b128 {vr(FR+16*k+4,4)}, v7 offset:{2048+1024*k}")
        A(f"ds_read_b128 {vr(FR+16*k+12,4)}, v104 offset:{2048+1024*k}")
    A(f"""
    s_cmp_ge_u32 s37, 10
    s_cbranch_scc1 {Lnd}
    """)
    dma("s39")
    A(f"{Lnd}:")
    for k in range(2):
        A(f"s_waitcnt lgkmcnt({4*(1-k)})")
        for a in range(2):
            for b in range(2):
                d = ACC + 32*a + 16*b
                A(f"v_mfma_f32_32x32x16_bf16 {vr(d,16)}, {vr(FR+16*k+4*a,4)}, {vr(FR+16*k+8+4*b,4)}, {vr(d,16)}")
    A(f"""
    s_add_u32 s38, s38, {G1_SLOT}
    s_cmp_eq_u32 s38, {G1_SLOT*G1_NSLOT}
    s_cselect_b32 s38, 0, s38
    s_add_u32 s39, s39, {G1_SLOT}
    s_cmp_eq_u32 s39, {G1_SLOT*G1_NSLOT}
    s_cselect_b32 s39, 0, s39
    s_add_u32 s37, s37, 1
    s_cmp_lt_u32 s37, 14
    s_cbranch_scc1 {Ll}
    """)
    mark(A,2)
    A(f"""
    s_lshl_b32 s41, s9, 2
    s_lshl_b32 s42, s33, 1
    s_add_u32 s41, s41, s42
    s_mul_i32 s41, s41, 112
    s_lshl_b32 s42, s10, 3
    s_add_u32 s41, s41, s42
    s_lshl_b32 s42, s32, 2
    s_add_u32 s41, s41, s42
    s_lshl_b32 s41, s41, 10
    s_add_u32 s42, s41, {112*1024}
    s_nop 4
    """)
    for b in range(2):
        for a in range(2):
            for kap in range(2):
                d = ACC + 32*a + 16*b + 8*kap
                mish8(A, list(range(d, d+8)), 72)
                o = 88 + 4*((2*a+kap) % 2)
                for j in range(4):
                    A(f"v_cvt_pk_bf16_f32 v{o+j}, v{d+2*j}, v{d+2*j+1}")
                A(f"buffer_store_dwordx4 {vr(o,4)}, v3, s[20:23], s{41+b} offen offset:{1024*(2*a+kap)}" + ST1)
    mark(A,3)

G2_LDS = 4*3*4096 + 4*2048
def g2_role(A, s_blk, lds0=0, R=6, wait_flags=None):
    A(f"""
    s_load_dwordx2 s[4:5], s[0:1], {KA['ws']}
    s_load_dwordx2 s[6:7], s[0:1], {KA['u']}
    s_load_dwordx2 s[44:45], s[0:1], {KA['out']}
    v_and_b32 v1, 63, v0
    v_lshrrev_b32 v2, 6, v0
    s_nop 0
    v_readfirstlane_b32 s8, v2
    s_and_b32 s9, {s_blk}, 31
    s_lshr_b32 s10, {s_blk}, 5
    v_lshlrev_b32 v3, 4, v1
    s_waitcnt lgkmcnt(0)
    """)
    srd(A, 12, 4, 14*112*1024, off=WS_W2F)
    srd(A, 16, 4, 64*112*1024, off=WS_HF)
    srd(A, 20, 4, 448*4096, off=WS_ST)
    srd(A, 24, 6, 2048*896)
    srd(A, 28, 44, 2048*896)
    A(f"""
    s_mul_i32 s32, s8, 28
    s_mul_i32 s33, s10, 224
    s_add_u32 s33, s33, s32
    s_lshl_b32 s33, s33, 10
    s_add_u32 s34, s33, {112*1024}
    s_mul_i32 s35, s9, 224
    s_add_u32 s35, s35, s32
    s_lshl_b32 s35, s35, 10
    s_add_u32 s36, s35, {112*1024}
    """)
    ACC = 8; FR = 72
    def load(ks):
        r = FR + 16*(ks % R); off = 1024*(ks % 4)
        A(f"buffer_load_dwordx4 {vr(r,4)}, v3, s[12:15], s33 offen offset:{off}")
        A(f"buffer_load_dwordx4 {vr(r+8,4)}, v3, s[16:19], s35 offen offset:{off}")
        A(f"buffer_load_dwordx4 {vr(r+4,4)}, v3, s[12:15], s34 offen offset:{off}")
        A(f"buffer_load_dwordx4 {vr(r+12,4)}, v3, s[16:19], s36 offen offset:{off}")
        if ks % 4 == 3:
            for s in (33, 34, 35, 36): A(f"s_add_u32 s{s}, s{s}, 4096")
    for ks in range(R-1): load(ks)
    for ks in range(28):
        if ks == 1: mark(A,0)
        if ks + R - 1 < 28:
            load(ks + R - 1)
            A(f"s_waitcnt vmcnt({4*(R-1)})")
        else:
            A(f"s_waitcnt vmcnt({4*(27-ks)})")
        r = FR + 16*(ks % R)
        for a in range(2):
            for b in range(2):
                d = ACC + 32*a + 16*b
                c = vr(d,16) if ks > 0 else "0"
                A(f"v_mfma_f32_32x32x16_bf16 {vr(d,16)}, {vr(r+4*a,4)}, {vr(r+8+4*b,4)}, {c}")
    mark(A,1)
    A(f"""
    s_lshr_b32 s37, s8, 1
    s_and_b32 s38, s8, 1
    s_lshl_b32 s39, s9, 6
    s_lshl_b32 s40, s38, 5
    s_add_u32 s39, s39, s40
    s_lshl_b32 s41, s10, 6
    s_lshl_b32 s40, s37, 5
    s_add_u32 s41, s41, s40
    s_mul_i32 s42, s39, 896
    s_lshl_b32 s40, s41, 1
    s_add_u32 s42, s42, s40
    v_and_b32 v4, 31, v1
    v_lshrrev_b32 v5, 5, v1
    v_mul_u32_u24 v6, 896, v4
    v_lshl_add_u32 v6, v5, 3, v6
    """)
    for j in range(4):
        A(f"buffer_load_dwordx2 {vr(72+2*j,2)}, v6, s[24:27], s42 offen offset:{16*j}")
    if wait_flags: wait_flags(A)
    A(f"""
    v_lshrrev_b32 v7, 2, v1
    v_and_b32 v80, 3, v1
    v_lshlrev_b32 v7, 12, v7
    v_lshl_add_u32 v7, v80, 4, v7
    s_lshl_b32 s43, s41, 12
    s_lshl_b32 s40, s39, 1
    s_add_u32 s43, s43, s40
    s_add_u32 s46, s43, {16*4096}
    buffer_load_dwordx4 v[80:83], v7, s[20:23], s43 offen{' sc1' if wait_flags else ''}
    buffer_load_dwordx4 v[84:87], v7, s[20:23], s46 offen{' sc1' if wait_flags else ''}
    """)
    for o in range(4):
        pass
    Lr = [A.label(f"Lg2r{w}") for w in range(4)]; Lre = A.label("Lg2re")
    A(f"v_add_u32 v88, {lds0}, v3")
    for w in range(3):
        A(f"s_cmp_eq_u32 s8, {w}")
        A(f"s_cbranch_scc1 {Lr[w]}")
    A(f"s_branch {Lr[3]}")
    for w in range(4):
        A(f"{Lr[w]}:")
        for o in range(4):
            if o == w: continue
            slot = (w - o - 1) % 4
            d = ACC + 32*(o >> 1) + 16*(o & 1)
            for j in range(4):
                A(f"ds_write_b128 v88, {vr(d+4*j,4)} offset:{o*12288 + slot*4096 + j*1024}")
        d = ACC + 32*(w >> 1) + 16*(w & 1)
        if d != ACC:
            for i in range(16): A(f"v_mov_b32 v{ACC+i}, v{d+i}")
        A(f"s_branch {Lre}")
    A(f"{Lre}:")
    A(f"""
    s_lshl_b32 s40, s8, 11
    s_add_u32 s40, s40, {lds0 + 49152}
    v_add_u32 v89, s40, v3
    s_waitcnt vmcnt(0)
    ds_write_b128 v89, v[80:83]
    ds_write_b128 v89, v[84:87] offset:1024
    s_mul_i32 s47, s8, 12288
    v_add_u32 v88, s47, v88
    s_waitcnt lgkmcnt(0)
    """)
    mark(A,2)
    A("s_barrier")
    mark(A,3)
    for sl in range(3):
        for j in range(4):
            A(f"ds_read_b128 {vr(24+16*sl+4*j,4)}, v88 offset:{sl*4096 + j*1024}")
    A(f"""
    v_lshrrev_b32 v90, 4, v1
    v_and_b32 v91, 15, v1
    v_lshrrev_b32 v92, 2, v91
    v_and_b32 v93, 3, v91
    v_lshrrev_b32 v94, 1, v90
    v_and_b32 v90, 1, v90
    v_lshl_add_u32 v92, v94, 2, v92
    v_lshlrev_b32 v92, 6, v92
    v_lshl_add_u32 v92, v90, 5, v92
    v_lshl_add_u32 v92, v93, 3, v92
    v_add_u32 v92, s40, v92
    """)
    for j in range(4):
        A(f"ds_read_b64_tr_b16 {vr(96+2*j,2)}, v92 offset:{512*j}")
    A("s_waitcnt lgkmcnt(4)")
    for sl in range(3):
        for i in range(0, 16, 2):
            A(f"v_pk_add_f32 {vr(ACC+i,2)}, {vr(ACC+i,2)}, {vr(24+16*sl+i,2)}")
    A(f"s_mov_b32 s40, {LOG2E:#x}")
    for i in range(16): A(f"v_mul_f32 v{24+i}, s40, v{ACC+i}")
    for i in range(16): A(f"v_exp_f32 v{24+i}, -v{24+i}")
    for i in range(16): A(f"v_add_f32 v{24+i}, 1.0, v{24+i}")
    for i in range(16): A(f"v_rcp_f32 v{24+i}, v{24+i}")
    for i in range(16): A(f"v_mul_f32 v{ACC+i}, v{ACC+i}, v{24+i}")
    A("s_waitcnt lgkmcnt(0)")
    for j in range(4):
        for hlf in range(2):
            sreg = 96+2*j+hlf; xreg = 72+2*j+hlf; g0 = ACC+4*j+2*hlf
            A(f"v_lshlrev_b32 v40, 16, v{sreg}")
            A(f"v_and_b32 v41, 0xffff0000, v{sreg}")
            A(f"v_lshlrev_b32 v42, 16, v{xreg}")
            A(f"v_and_b32 v43, 0xffff0000, v{xreg}")
            A(f"v_fmac_f32 v42, v40, v{g0}")
            A(f"v_fmac_f32 v43, v41, v{g0+1}")
            A(f"v_cvt_pk_bf16_f32 v{44+2*j+hlf}, v42, v43")
        A(f"buffer_store_dwordx2 {vr(44+2*j,2)}, v6, s[28:31], s42 offen offset:{16*j}")
```

```python
from asmlib import *
WS_TS = WS_END + 4096
def ts_begin(A):
    for i in range(5): A(f"s_mov_b32 s{80+i}, 0")
    A("s_memrealtime s[90:91]")
    A("s_memtime s[92:93]")
def ts_mark(A, idx):
    A(f"s_memrealtime s[96:97]")
    A("s_waitcnt lgkmcnt(0)")
    A(f"s_mov_b32 s{80+idx}, s96")
def ts_end(A, launch):
    A(f"""
    s_waitcnt vmcnt(0) lgkmcnt(0)
    s_memrealtime s[94:95]
    s_memtime s[96:97]
    s_load_dwordx2 s[98:99], s[0:1], {KA['ws']}
    s_waitcnt lgkmcnt(0)
    s_sub_u32 s96, s96, s92
    s_add_u32 s98, s98, {WS_TS + launch*65536}
    s_addc_u32 s99, s99, 0
    s_lshl_b32 s97, s2, 6
    v_mov_b32 v0, s97
    v_mov_b32 v2, s90
    v_mov_b32 v3, s94
    v_mov_b32 v4, s96
    v_mov_b32 v5, s80
    v_mov_b32 v6, s81
    v_mov_b32 v7, s82
    v_mov_b32 v8, s83
    v_mov_b32 v9, s84
    global_store_dwordx4 v0, v[2:5], s[98:99]
    global_store_dwordx4 v0, v[6:9], s[98:99] offset:16
    s_waitcnt vmcnt(0)
    """)
```

```python
from asmlib import *
KG_LDS_TILE = 16*272
KG_TAB = 4*KG_LDS_TILE
KG_LDS = KG_TAB + 720*4
def kg_role(A, s_ch, lds0=0):
    A(f"""
    s_load_dwordx4 s[4:7], s[0:1], {KA['logA']}
    s_load_dwordx4 s[8:11], s[0:1], {KA['Cre']}
    s_load_dwordx4 s[12:15], s[0:1], {KA['logdt']}
    s_load_dwordx2 s[16:17], s[0:1], {KA['ws']}
    v_and_b32 v1, 63, v0
    v_lshrrev_b32 v2, 6, v0
    s_lshl_b32 s18, {s_ch}, 9
    v_lshlrev_b32 v3, 1, v0
    v_add_u32 v3, s18, v3
    s_lshl_b32 s19, {s_ch}, 1
    s_and_b32 s19, s19, 0xfffffffc
    s_waitcnt lgkmcnt(0)
    """)
    srd(A, 20, 4, 448*512); srd(A, 24, 6, 448*512); srd(A, 28, 8, 448*512); srd(A, 32, 10, 448*512)
    A(f"""
    buffer_load_ushort v4, v3, s[20:23], 0 offen
    buffer_load_ushort v5, v3, s[24:27], 0 offen
    buffer_load_ushort v6, v3, s[28:31], 0 offen
    buffer_load_ushort v7, v3, s[32:35], 0 offen
    s_load_dword s36, s[12:13], s19
    s_load_dword s37, s[14:15], s19
    """)
    srd(A, 40, 16, 448*4096, off=WS_K if WS_K else None)
    A(f"""
    v_mov_b32 v10, 0
    v_cmp_le_u32 vcc, 32, v0
    v_lshlrev_b32 v14, 3, v0
    v_addc_co_u32 v10, vcc, 0, v10, vcc
    v_cmp_le_u32 vcc, 64, v0
    s_nop 1
    v_addc_co_u32 v10, vcc, 0, v10, vcc
    v_cmp_le_u32 vcc, 128, v0
    s_nop 1
    v_addc_co_u32 v10, vcc, 0, v10, vcc
    v_mov_b32 v15, 1
    v_lshlrev_b32 v11, v10, v15
    v_lshrrev_b32 v11, 1, v11
    v_min_u32 v12, 1, v10
    v_sub_u32 v11, v11, v12
    v_lshlrev_b32 v13, 9, v10
    v_add_u32 v13, {lds0+KG_TAB}, v13
    """)
    for e in range(8):
        A(f"""
        v_add_u32 v15, {e}, v14
        v_lshrrev_b32 v16, v10, v15
        v_and_b32 v16, v16, v12
        v_add3_u32 v15, v15, v11, v16
        v_lshrrev_b32 v15, v10, v15
        v_lshl_add_u32 v{100+e}, v15, 2, v13
        """)
    A(f"""
    v_mul_u32_u24 v19, {KG_LDS_TILE}, v2
    v_add_u32 v19, {lds0}, v19
    v_lshl_add_u32 v17, v1, 2, v19
    v_and_b32 v20, 15, v1
    v_lshrrev_b32 v21, 4, v1
    v_mul_u32_u24 v18, 272, v20
    v_add_u32 v18, v18, v19
    v_lshl_add_u32 v18, v21, 4, v18
    """)
    A(f"""
    v_and_b32 v22, 1, v21
    v_lshrrev_b32 v23, 1, v21
    v_lshlrev_b32 v24, 5, v20
    v_lshl_add_u32 v24, v22, 4, v24
    v_lshl_add_u32 v24, v23, 9, v24
    v_add_u32 v90, {lds0+KG_TAB}, v24
    """)
    A(f"""
    v_lshlrev_b32 v24, 4, v20
    v_lshl_add_u32 v24, v21, 8, v24
    v_add_u32 v24, {lds0+KG_TAB+1024}, v24
    v_lshlrev_b32 v25, 3, v20
    v_lshl_add_u32 v25, v21, 8, v25
    v_add_u32 v25, {lds0+KG_TAB+1536-512}, v25
    v_cmp_gt_u32 vcc, 2, v21
    v_add_u32 v26, 8, v24
    v_add_u32 v27, 128, v25
    v_cndmask_b32 v91, v25, v24, vcc
    v_cndmask_b32 v92, v27, v26, vcc
    """)
    A(f"""
    v_lshlrev_b32 v24, 2, v20
    v_lshl_add_u32 v25, v21, 8, v24
    v_add_u32 v25, {lds0+KG_TAB+2048}, v25
    v_add_u32 v26, {lds0+KG_TAB+672*4}, v24
    v_cmp_gt_u32 vcc, 3, v21
    s_nop 1
    v_cndmask_b32 v93, v26, v25, vcc
    v_cmp_gt_u32 vcc, 2, v21
    v_add_u32 v27, 64, v25
    s_nop 0
    v_cndmask_b32 v94, v26, v27, vcc
    """)
    A(f"""
    s_waitcnt lgkmcnt(0)
    s_and_b32 s44, {s_ch}, 1
    s_lshl_b32 s44, s44, 4
    s_lshr_b32 s36, s36, s44
    s_lshl_b32 s36, s36, 16
    s_lshr_b32 s37, s37, s44
    s_lshl_b32 s37, s37, 16
    s_mov_b32 s45, {LOG2E:#x}
    s_mov_b32 s46, {INV2PI:#x}
    v_mov_b32 v28, s36
    v_mul_f32 v28, s45, v28
    v_exp_f32 v28, v28
    s_nop 0
    v_cvt_pk_bf16_f32 v28, v28, v28
    v_and_b32 v28, 0xffff0000, v28
    s_waitcnt vmcnt(0)
    """)
    mark(A,0)
    A(f"""
    v_lshlrev_b32 v4, 16, v4
    v_lshlrev_b32 v5, 16, v5
    v_lshlrev_b32 v6, 16, v6
    v_lshlrev_b32 v7, 16, v7
    v_mul_f32 v4, s45, v4
    v_exp_f32 v4, v4
    v_mul_f32 v5, v28, v5
    v_cvt_pk_bf16_f32 v4, v4, v4
    v_and_b32 v4, 0xffff0000, v4
    v_mul_f32 v4, v28, v4
    v_mul_f32 v4, s45, v4
    v_mul_f32 v5, s46, v5
    v_add_f32 v28, v28, v28
    v_mul_f32 v30, v28, v6
    v_mul_f32 v31, v28, v7
    """)
    def cis(dst, p, conj=False):
        A(f"""
        v_mul_f32 v8, {float(-p)}, v4
        v_mul_f32 v9, {float(p)}, v5
        v_exp_f32 v8, v8
        v_fract_f32 v9, v9
        s_nop 0
        v_cos_f32 v10, v9
        v_sin_f32 v11, v9
        s_nop 0
        v_mul_f32 v{dst}, v8, v10
        v_mul_f32 v{dst+1}, {'-' if conj else ''}v8, v11
        """.replace("-1.0, v4", "-1.0, v4"))
    def lit(x):
        import struct
        return hex(struct.unpack("<I", struct.pack("<f", x))[0])
    def cis2(dst, p, conj=False):
        A(f"v_mul_f32 v8, {lit(-float(p))}, v4")
        A(f"v_mul_f32 v9, {lit(float(p))}, v5")
        A(f"v_exp_f32 v8, v8")
        A(f"v_fract_f32 v9, v9")
        A(f"s_nop 0")
        A(f"v_cos_f32 v10, v9")
        A(f"v_sin_f32 v11, v9")
        A(f"s_nop 0")
        A(f"v_mul_f32 v{dst}, v8, v10")
        if conj: A(f"v_mul_f32_e64 v{dst+1}, -v8, v11")
        else: A(f"v_mul_f32 v{dst+1}, v8, v11")
    Z = {1:32, 2:34, 3:36, 4:38, 5:40, 6:42, 7:44}
    V = 46
    W = {r: 48 + 2*(r-1) for r in range(1, 9)}
    T = 64
    cis2(W[1], 8, conj=True)
    cis2(Z[1], 1)
    cis2(V, 128)
    def put(slot, pair):
        A(f"v_cvt_pk_bf16_f32 v12, v{pair}, v{pair+1}")
        A(f"ds_write_b32 v17, v12 offset:{slot*272}")
    tog = [0]
    def putr(slot, pair):
        r = 12 + (tog[0] % 4); tog[0] += 1
        A(f"v_cvt_pk_bf16_f32 v{r}, v{pair}, v{pair+1}")
        A(f"ds_write_b32 v17, v{r} offset:{slot*272}")
    A("v_mov_b32 v12, 0x00003f80")
    A("ds_write_b32 v17, v12 offset:0")
    putr(1, W[1])
    cmul(A, W[2], W[1], W[1]); cmul(A, Z[2], Z[1], Z[1]); putr(2, W[2])
    cmul(A, W[3], W[2], W[1]); cmul(A, W[4], W[2], W[2]); cmul(A, Z[3], Z[2], Z[1]); cmul(A, Z[4], Z[2], Z[2])
    putr(3, W[3]); putr(4, W[4])
    cmul(A, W[5], W[4], W[1]); cmul(A, W[6], W[4], W[2]); cmul(A, W[7], W[4], W[3]); cmul(A, W[8], W[4], W[4])
    putr(5, W[5]); putr(6, W[6]); putr(7, W[7]); putr(8, W[8])
    for r in range(9, 16):
        t = T + 2*(r % 4)
        cmul(A, t, W[8], W[r-8]); putr(r, t)
    cmul(A, Z[5], Z[4], Z[1]); cmul(A, Z[6], Z[4], Z[2]); cmul(A, Z[7], Z[4], Z[3])
    BF = 72
    A("s_waitcnt lgkmcnt(0)")
    for k in range(4):
        A(f"ds_read_b128 {vr(BF+4*k,4)}, v18 offset:{64*k}")
    mark(A,1)
    C = [30, 48]
    cpair = {0: 30}
    nxt = [48, 50, 52, 54, 56, 58, 60, 62]
    def chain(k):
        dst = nxt[k % 8]
        cmul(A, dst, cpair[k-1], V)
        cpair[k] = dst
    AF = 108
    ACC = {0: 124, 1: 128, 2: 132}
    def tile_mfma(ti):
        A("s_waitcnt lgkmcnt(0)")
        for k in range(4):
            A(f"ds_read_b128 {vr(AF+4*k,4)}, v18 offset:{64*k}")
    def tile_mfma2(ti):
        for k in range(4):
            A(f"s_waitcnt lgkmcnt({3-k})")
            c = "0" if k == 0 else vr(ACC[ti],4)
            A(f"v_mfma_f32_16x16x32_bf16 {vr(ACC[ti],4)}, {vr(AF+4*k,4)}, {vr(BF+4*k,4)}, {c}")
    putr(0, cpair[0])
    chain(1)
    for ph in range(1, 8):
        t = T + 2*(ph % 4); cmul(A, t, cpair[0], Z[ph]); putr(ph, t)
    putr(8, cpair[1])
    chain(2)
    for ph in range(1, 8):
        t = T + 2*(ph % 4); cmul(A, t, cpair[1], Z[ph]); putr(8+ph, t)
    tile_mfma(0)
    chain(3)
    putr(0, cpair[2])
    for j, ph in enumerate((2, 4, 6)):
        t = T + 2*(j % 4); cmul(A, t, cpair[2], Z[ph]); putr(1+j, t)
    chain(4)
    putr(4, cpair[3])
    for j, ph in enumerate((2, 4, 6)):
        t = T + 2*(j % 4); cmul(A, t, cpair[3], Z[ph]); putr(5+j, t)
    A("s_waitcnt lgkmcnt(8)")
    for k in range(4):
        c = "0" if k == 0 else vr(ACC[0],4)
        A(f"v_mfma_f32_16x16x32_bf16 {vr(ACC[0],4)}, {vr(AF+4*k,4)}, {vr(BF+4*k,4)}, {c}")
    for k in range(4):
        if 4+k < 7: chain(5+k)
        else: chain(8)
        putr(8+2*k, cpair[4+k])
        t = T + 2*(k % 4); cmul(A, t, cpair[4+k], Z[4]); putr(9+2*k, t)
    tile_mfma(1)
    putr(0, cpair[8])
    for k in range(9, 17):
        chain(k); putr(k-8, cpair[k])
    A("s_waitcnt lgkmcnt(9)")
    for k in range(4):
        c = "0" if k == 0 else vr(ACC[1],4)
        A(f"v_mfma_f32_16x16x32_bf16 {vr(ACC[1],4)}, {vr(AF+4*k,4)}, {vr(BF+4*k,4)}, {c}")
    tile_mfma(2)
    A("s_waitcnt lgkmcnt(0)")
    for k in range(4):
        c = "0" if k == 0 else vr(ACC[2],4)
        A(f"v_mfma_f32_16x16x32_bf16 {vr(ACC[2],4)}, {vr(AF+4*k,4)}, {vr(BF+4*k,4)}, {c}")
    A(f"v_mul_u32_u24 v19, {KG_LDS_TILE}, v2")
    A(f"v_lshl_add_u32 v19, v1, 4, v19")
    A(f"v_add_u32 v19, {lds0}, v19")
    A(f"ds_write_b128 v19, {vr(ACC[0],4)}")
    A(f"ds_write_b128 v19, {vr(ACC[1],4)} offset:1024")
    A(f"v_readfirstlane_b32 s38, v2")
    A(f"v_lshlrev_b32 v20, 4, v1")
    A(f"v_lshl_add_u32 v20, v2, 10, v20")
    A(f"v_add_u32 v20, {lds0}, v20")
    A("s_nop 4")
    A(f"ds_write_b128 v19, {vr(ACC[2],4)} offset:2048")
    A("s_waitcnt lgkmcnt(0)")
    mark(A,2)
    A("s_barrier")
    Lt = [A.label(f"Lkgt{i}") for i in range(3)]; Lte = A.label("Lkgte")
    A("s_cmp_eq_u32 s38, 3")
    A(f"s_cbranch_scc1 {Lte}")
    for j in range(4):
        A(f"ds_read_b128 {vr(108+4*j,4)}, v20 offset:{j*KG_LDS_TILE}")
    A("s_waitcnt lgkmcnt(2)")
    A("v_pk_add_f32 v[108:109], v[108:109], v[112:113]")
    A("v_pk_add_f32 v[110:111], v[110:111], v[114:115]")
    A("s_waitcnt lgkmcnt(0)")
    A("v_pk_add_f32 v[116:117], v[116:117], v[120:121]")
    A("v_pk_add_f32 v[118:119], v[118:119], v[122:123]")
    A("v_pk_add_f32 v[108:109], v[108:109], v[116:117]")
    A("v_pk_add_f32 v[110:111], v[110:111], v[118:119]")
    A("s_cmp_eq_u32 s38, 1")
    A(f"s_cbranch_scc1 {Lt[1]}")
    A("s_cmp_eq_u32 s38, 2")
    A(f"s_cbranch_scc1 {Lt[2]}")
    for i in range(4):
        A(f"ds_write_b32 v90, v{108+i} offset:{4*i}")
    A(f"s_branch {Lte}")
    A(f"{Lt[1]}:")
    A("ds_write_b32 v91, v108")
    A("ds_write_b32 v91, v109 offset:4")
    A("ds_write_b32 v92, v110")
    A("ds_write_b32 v92, v111 offset:4")
    A(f"s_branch {Lte}")
    A(f"{Lt[2]}:")
    A("ds_write_b32 v93, v108")
    A("ds_write_b32 v94, v109")
    A("ds_write_b32 v94, v110 offset:64")
    A("ds_write_b32 v94, v111 offset:128")
    A(f"{Lte}:")
    A("s_waitcnt lgkmcnt(0)")
    mark(A,3)
    A("s_barrier")
    mark(A,4)
    for e in range(8):
        A(f"ds_read_b32 v{108+e}, v{100+e}")
    A(f"""
    v_cmp_eq_u32 vcc, 0, v0
    v_mov_b32 v8, s37
    s_nop 0
    v_cndmask_b32 v8, 0, v8, vcc
    s_lshl_b32 s18, {s_ch}, 12
    v_lshlrev_b32 v9, 4, v0
    v_add_u32 v9, s18, v9
    s_waitcnt lgkmcnt(0)
    v_add_f32 v108, v108, v8
    v_cvt_pk_bf16_f32 v108, v108, v109
    v_cvt_pk_bf16_f32 v109, v110, v111
    v_cvt_pk_bf16_f32 v110, v112, v113
    v_cvt_pk_bf16_f32 v111, v114, v115
    buffer_store_dwordx4 v[108:111], v9, s[40:43], 0 offen
    """)
```

```python
from build_test import *
import kg, cv, prep, gemm, instr, sys
TS = '--ts' in sys.argv
import asmlib
if TS: asmlib.MARK[0] = instr.ts_mark
def B(A):
    if TS: instr.ts_begin(A)
def E(A, l):
    if TS: instr.ts_end(A, l)
    A('s_endpgm')
def k0(A):
    B(A)
    A("""
    s_cmp_lt_u32 s2, 64
    s_cbranch_scc1 L0_ln
    s_cmp_lt_u32 s2, 176
    s_cbranch_scc1 L0_wr
    s_cmp_ge_u32 s2, 624
    s_cbranch_scc1 L0_end
    s_sub_u32 s48, s2, 176
    """)
    kg.kg_role(A, "s48")
    E(A, 0)
    A("L0_ln:")
    A("s_mov_b32 s48, s2")
    prep.ln_role(A, "s48")
    E(A, 0)
    A("L0_wr:")
    A("s_sub_u32 s48, s2, 64")
    prep.wr_role(A, "s48")
    E(A, 0)
    A("L0_end:")
    A("s_endpgm")
def k1(A):
    B(A)
    A("""
    s_cmp_lt_u32 s2, 224
    s_cbranch_scc1 L1_g1
    s_cmp_ge_u32 s2, 448
    s_cbranch_scc1 L1_end
    s_sub_u32 s48, s2, 224
    """)
    cv.cv_role(A, "s48")
    E(A, 1)
    A("L1_g1:")
    A("s_mov_b32 s48, s2")
    gemm.g1_role(A, "s48")
    E(A, 1)
    A("L1_end:")
    A("s_endpgm")
def k2(A):
    B(A)
    A("""
    s_cmp_ge_u32 s2, 224
    s_cbranch_scc1 L2_end
    s_mov_b32 s48, s2
    """)
    gemm.g2_role(A, "s48")
    E(A, 2)
    A("L2_end:")
    A("s_endpgm")
lds0 = max(kg.KG_LDS, prep.LN_LDS, prep.WR_LDS)
build([("p0_kernel", 624, 256, lds0), ("p1_kernel", 448, 256, max(gemm.G1_LDS, cv.CV_LDS)), ("p2_kernel", 224, 256, gemm.G2_LDS)],
      {"p0_kernel": (k0, 136), "p1_kernel": (k1, 248), "p2_kernel": (k2, 168)}, "full3_ts.s" if TS else "full3.s")
```

```python
from asmlib import *
CV_COPY = 4160
CV_U = 4*CV_COPY
CV_CH = CV_U + 512 + 4096
CV_LDS = 2*CV_CH
def cv_role(A, s_blk, lds0=0, post=None):
    A(f"""
    s_load_dwordx2 s[4:5], s[0:1], {KA['ws']}
    v_and_b32 v1, 63, v0
    v_lshrrev_b32 v2, 6, v0
    s_nop 0
    v_readfirstlane_b32 s6, v2
    s_nop 3
    s_lshr_b32 s7, s6, 1
    s_and_b32 s6, s6, 1
    s_lshl_b32 s8, {s_blk}, 1
    s_add_u32 s8, s8, s7
    s_lshl_b32 s9, s8, 12
    s_mul_i32 s10, s7, {CV_CH}
    s_add_u32 s10, s10, {lds0}
    s_waitcnt lgkmcnt(0)
    """)
    def chan_srd(s, off):
        A(f"s_add_u32 s{s}, s4, s9")
        A(f"s_addc_u32 s{s+1}, s5, 0")
        if off:
            A(f"s_add_u32 s{s}, s{s}, {off}")
            A(f"s_addc_u32 s{s+1}, s{s+1}, 0")
        A(f"s_mov_b32 s{s+2}, 4096")
        A(f"s_mov_b32 s{s+3}, 0x00020000")
    chan_srd(12, WS_K); chan_srd(16, WS_XT); chan_srd(20, WS_ST)
    A(f"""
    s_lshl_b32 s11, s6, 6
    v_add_u32 v3, s11, v1
    v_lshlrev_b32 v4, 4, v3
    v_subrev_u32 v5, 8, v4
    buffer_load_dwordx4 v[8:11], v4, s[12:15], 0 offen
    buffer_load_dwordx2 v[12:13], v5, s[12:15], 0 offen
    buffer_load_dwordx4 v[16:19], v4, s[12:15], 0 offen offset:2048
    buffer_load_dwordx2 v[20:21], v4, s[12:15], 0 offen offset:2040
    buffer_load_dwordx4 v[24:27], v4, s[16:19], 0 offen
    buffer_load_dwordx4 v[28:31], v4, s[16:19], 0 offen offset:2048
    """)
    A(f"""
    v_mov_b32 v32, 0
    v_mov_b32 v33, 0
    v_mov_b32 v34, 0
    v_mov_b32 v35, 0
    v_lshlrev_b32 v6, 4, v1
    v_add_u32 v6, s10, v6
    v_cmp_gt_u32 vcc, 32, v1
    s_and_saveexec_b64 s[24:25], vcc
    ds_write_b128 v6, v[32:35] offset:{CV_U}
    s_mov_b64 exec, s[24:25]
    v_lshrrev_b32 v7, 1, v1
    v_mul_u32_u24 v7, {CV_COPY}, v7
    v_and_b32 v36, 1, v1
    v_lshl_add_u32 v7, v36, 4, v7
    v_add_u32 v7, s10, v7
    v_cmp_gt_u32 vcc, 8, v1
    s_and_saveexec_b64 s[24:25], vcc
    ds_write_b128 v7, v[32:35]
    s_mov_b64 exec, s[24:25]
    """)
    A(f"""
    v_add_u32 v36, s10, v4
    v_add_u32 v37, {CV_U+512}, v36
    v_add_u32 v36, 32, v36
    """)
    A(f"""
    v_lshrrev_b32 v40, 4, v1
    v_and_b32 v41, 15, v1
    v_lshrrev_b32 v42, 2, v41
    v_and_b32 v43, 3, v41
    v_mul_u32_u24 v38, {CV_COPY}, v42
    v_lshl_add_u32 v38, v43, 3, v38
    v_lshlrev_b32 v44, 4, v40
    v_sub_u32 v38, v38, v44
    v_add_u32 v38, 56, v38
    v_add_u32 v38, s10, v38
    v_lshlrev_b32 v39, 5, v41
    v_add_u32 v39, v39, v44
    v_add_u32 v39, {CV_U + 512 - 32 - 448}, v39
    v_add_u32 v39, s10, v39
    """)
    A(f"""
    v_lshlrev_b32 v45, 5, v41
    v_lshl_add_u32 v45, v40, 3, v45
    """)
    def build(k0, p0, woff):
        a = 46
        A(f"v_alignbyte_b32 v{a}, v{p0+1}, v{p0}, 2")
        A(f"v_alignbyte_b32 v{a+1}, v{k0}, v{p0+1}, 2")
        A(f"v_alignbyte_b32 v{a+2}, v{k0+1}, v{k0}, 2")
        A(f"v_alignbyte_b32 v{a+3}, v{k0+2}, v{k0+1}, 2")
        A(f"v_alignbyte_b32 v{a+4}, v{k0+3}, v{k0+2}, 2")
        A(f"ds_write_b128 v36, {vr(k0,4)} offset:{woff}")
        A(f"v_mov_b32 v52, v{p0+1}")
        A(f"v_mov_b32 v53, v{k0}")
        A(f"v_mov_b32 v54, v{k0+1}")
        A(f"v_mov_b32 v55, v{k0+2}")
        A(f"ds_write_b128 v36, v[52:55] offset:{woff + 2*CV_COPY}")
        A(f"ds_write_b128 v36, v[46:49] offset:{woff + 3*CV_COPY}")
        A(f"v_mov_b32 v56, v47")
        A(f"v_mov_b32 v57, v48")
        A(f"v_mov_b32 v58, v49")
        A(f"v_mov_b32 v59, v50")
        A(f"ds_write_b128 v36, v[56:59] offset:{woff + 1*CV_COPY}")
    A("s_waitcnt vmcnt(4)")
    mark(A,0)
    build(8, 12, 0)
    A("s_waitcnt vmcnt(2)")
    build(16, 20, 2048)
    A("s_waitcnt vmcnt(0)")
    A("ds_write_b128 v37, v[24:27]")
    A("ds_write_b128 v37, v[28:31] offset:2048")
    A("s_waitcnt lgkmcnt(0)")
    mark(A,1)
    A("s_barrier")
    mark(A,2)
    ACC = 64; BR = 96; AR = 224; NA = 6
    Lp1 = A.label("Lcv_p1"); Lj = A.label("Lcv_join")
    A("s_cmp_eq_u32 s6, 1")
    A(f"s_cbranch_scc1 {Lp1}")
    def variant(D):
        mmax = 8*(8 - D[0])
        ops = []
        def issueA(m):
            r = AR + 4*(m % NA)
            A(f"ds_read_b64_tr_b16 {vr(r,2)}, v38 offset:{64*m + 8}")
            A(f"ds_read_b64_tr_b16 {vr(r+2,2)}, v38 offset:{64*m}")
            ops.append(("A", m)); ops.append(("A", m))
        def issueB(mu):
            for si, d in enumerate(D):
                A(f"ds_read_b128 {vr(BR + 32*si + 4*mu, 4)}, v39 offset:{512*d + 64*(7-mu)}")
                ops.append(("B", mu))
        LA = NA - 1
        issueB(0); issueA(0); issueB(1)
        for m in range(1, LA): issueA(m)
        touched = set()
        for m in range(mmax):
            mp, mu = divmod(m, 8)
            if m + 2 < 8: issueB(m + 2)
            if m + LA < mmax: issueA(m + LA)
            need = [i for i, t in enumerate(ops) if t == ("A", m) or (mp == 0 and t == ("B", mu))]
            cnt = len(ops) - 1 - max(need)
            cnt = min(cnt, 15)
            A(f"s_waitcnt lgkmcnt({cnt})")
            r = AR + 4*(m % NA)
            for si, d in enumerate(D):
                q = mp + d
                if q > 7: continue
                c = vr(ACC + 4*q, 4) if q in touched else "0"
                touched.add(q)
                A(f"v_mfma_f32_16x16x32_bf16 {vr(ACC+4*q,4)}, {vr(r,4)}, {vr(BR+32*si+4*mu,4)}, {c}")
        return touched
    t0 = variant([0, 3, 4, 7])
    assert t0 == set(range(8))
    A(f"s_branch {Lj}")
    A(f"{Lp1}:")
    A(f"v_mov_b32 v{ACC}, 0"); A(f"v_mov_b32 v{ACC+1}, 0"); A(f"v_mov_b32 v{ACC+2}, 0"); A(f"v_mov_b32 v{ACC+3}, 0")
    t1 = variant([1, 2, 5, 6])
    assert t1 == set(range(1, 8))
    A(f"{Lj}:")
    mark(A,3)
    A(f"""
    s_barrier
    s_lshl_b32 s11, s6, 12
    s_add_u32 s11, s11, s10
    v_lshlrev_b32 v6, 4, v1
    v_add_u32 v7, s11, v6
    s_xor_b32 s26, s6, 1
    s_lshl_b32 s26, s26, 12
    s_add_u32 s26, s26, s10
    v_add_u32 v6, s26, v6
    """)
    Le1 = A.label("Lcv_e1"); Le2 = A.label("Lcv_e2")
    A("s_cmp_eq_u32 s6, 1")
    A(f"s_cbranch_scc1 {Le1}")
    def fin(send, keep):
        for j, q in enumerate(send):
            A(f"ds_write_b128 v7, {vr(ACC+4*q,4)} offset:{1024*j}")
        A("s_waitcnt lgkmcnt(0)")
        A("s_barrier")
        for j in range(4):
            A(f"ds_read_b128 {vr(8+4*j,4)}, v6 offset:{1024*j}")
        for j, q in enumerate(keep):
            A(f"s_waitcnt lgkmcnt({3-j})")
            for i in range(4):
                A(f"v_add_f32 v{8+4*j+i}, v{8+4*j+i}, v{ACC+4*q+i}")
            A(f"v_cvt_pk_bf16_f32 v{8+4*j}, v{8+4*j}, v{8+4*j+1}")
            A(f"v_cvt_pk_bf16_f32 v{8+4*j+1}, v{8+4*j+2}, v{8+4*j+3}")
            A(f"buffer_store_dwordx2 {vr(8+4*j,2)}, v45, s[20:23], 0 offen offset:{512*q}" + (post or ""))
    fin([4,5,6,7], [0,1,2,3])
    A(f"s_branch {Le2}")
    A(f"{Le1}:")
    fin([0,1,2,3], [4,5,6,7])
    A(f"{Le2}:")
    mark(A,4)
```

```python
from asmlib import *
ST1 = ""
G1_SLOT = 16384; G1_NSLOT = 5
G1_LDS = G1_SLOT*G1_NSLOT
def mish8(A, regs, tmp):
    n = len(regs); r0 = regs[0]
    T = tmp; U = tmp + n
    for i in range(0, n, 2): A(f"v_pk_mul_f32 {vr(T+i,2)}, {vr(r0+i,2)}, s[44:45]")
    for i in range(n): A(f"v_exp_f32 v{T+i}, v{T+i}")
    for i in range(0, n, 2): A(f"v_pk_add_f32 {vr(U+i,2)}, {vr(T+i,2)}, 2.0 op_sel_hi:[1,0]")
    for i in range(0, n, 2): A(f"v_pk_fma_f32 {vr(T+i,2)}, {vr(T+i,2)}, {vr(U+i,2)}, 2.0 op_sel_hi:[1,1,0]")
    for i in range(n): A(f"v_rcp_f32 v{T+i}, v{T+i}")
    for i in range(0, n, 2): A(f"v_pk_fma_f32 {vr(T+i,2)}, {vr(T+i,2)}, -2.0, 1.0 op_sel_hi:[1,0,0]")
    for i in range(0, n, 2): A(f"v_pk_mul_f32 {vr(r0+i,2)}, {vr(r0+i,2)}, {vr(T+i,2)}")

def g1_role(A, s_blk, lds0=0):
    A(f"""
    s_load_dwordx2 s[4:5], s[0:1], {KA['ws']}
    s_load_dwordx2 s[6:7], s[0:1], {KA['b1']}
    v_and_b32 v1, 63, v0
    v_lshrrev_b32 v2, 6, v0
    s_nop 0
    v_readfirstlane_b32 s8, v2
    s_and_b32 s9, {s_blk}, 15
    s_lshr_b32 s10, {s_blk}, 4
    s_waitcnt lgkmcnt(0)
    """)
    srd(A, 12, 4, 56*28*1024, off=WS_W1F)
    srd(A, 16, 4, 64*28*1024, off=WS_XF)
    srd(A, 20, 4, 64*112*1024, off=WS_HF)
    srd(A, 24, 6, 1792*2)
    A(f"""
    s_lshl_b32 s28, s10, 2
    s_add_u32 s28, s28, s8
    s_mul_i32 s28, s28, {28*1024}
    s_lshl_b32 s29, s9, 2
    s_add_u32 s29, s29, s8
    s_mul_i32 s29, s29, {28*1024}
    s_mov_b32 s49, {(2048-14*2048) & 0xffffffff:#x}
    s_lshr_b32 s31, s9, 3
    s_mul_i32 s31, s31, 7
    s_add_u32 s31, s31, s10
    s_cmp_ge_u32 s31, 14
    s_cselect_b32 s33, 14, 0
    s_sub_u32 s31, s31, s33
    s_lshl_b32 s33, s31, 11
    s_add_u32 s28, s28, s33
    s_add_u32 s29, s29, s33
    v_lshlrev_b32 v3, 4, v1
    s_lshl_b32 s30, s8, 11
    s_add_u32 s30, s30, {lds0}
    s_mov_b32 s44, {LOG2E:#x}
    s_mov_b32 s45, {LOG2E:#x}
    """)
    def dma_pieces(slot_off):
        return [[f"s_add_u32 m0, s30, {slot_off}", "s_nop 0", "buffer_load_dwordx4 v3, s[12:15], s28 offen lds"],
                ["buffer_load_dwordx4 v3, s[12:15], s28 offen offset:1024 lds"],
                [f"s_add_u32 m0, s30, {slot_off + 8192}", "s_nop 0", "buffer_load_dwordx4 v3, s[16:19], s29 offen lds"],
                ["buffer_load_dwordx4 v3, s[16:19], s29 offen offset:1024 lds", "s_cmp_eq_u32 s31, 13",
                 "s_cselect_b32 s47, s49, 2048", "s_cselect_b32 s31, -1, s31", "s_add_u32 s31, s31, 1",
                 "s_add_u32 s28, s28, s47", "s_add_u32 s29, s29, s47"]]
    def dma(slot_off):
        for p in dma_pieces(slot_off):
            for l in p: A(l)
    def dma_old(slot_off):
        A(f"s_add_u32 m0, s30, {slot_off}")
        A("s_nop 0")
        A("buffer_load_dwordx4 v3, s[12:15], s28 offen lds")
        A("buffer_load_dwordx4 v3, s[12:15], s28 offen offset:1024 lds")
        A("s_add_u32 m0, m0, 8192")
        A("s_add_u32 s28, s28, 2048")
        A("buffer_load_dwordx4 v3, s[16:19], s29 offen lds")
        A("buffer_load_dwordx4 v3, s[16:19], s29 offen offset:1024 lds")
        A("s_add_u32 s29, s29, 2048")
    A(f"""
    s_and_b32 s32, s8, 1
    s_lshr_b32 s33, s8, 1
    s_lshl_b32 s34, s10, 8
    s_lshl_b32 s35, s32, 7
    s_add_u32 s34, s34, s35
    v_lshrrev_b32 v4, 5, v1
    v_lshlrev_b32 v4, 3, v4
    """)
    for a in range(2):
        for j in range(4):
            A(f"buffer_load_dwordx2 {vr(72+8*a+2*j,2)}, v4, s[24:27], s34 offen offset:{64*a+16*j}")
    for c in range(4):
        dma(c*G1_SLOT)
    ACC = 8
    A(f"""
    s_lshl_b32 s35, s32, 12
    s_add_u32 s35, s35, {lds0}
    v_add_u32 v5, s35, v3
    s_lshl_b32 s36, s33, 12
    s_add_u32 s36, s36, {lds0 + 8192}
    v_add_u32 v6, s36, v3
    s_waitcnt vmcnt(16)
    """)
    mark(A,0)
    for a in range(2):
        for j in range(4):
            s0 = 72+8*a+2*j
            for b in range(2):
                d = ACC + 32*a + 16*b + 4*j
                A(f"v_lshlrev_b32 v{d}, 16, v{s0}")
                A(f"v_and_b32 v{d+1}, 0xffff0000, v{s0}")
                A(f"v_lshlrev_b32 v{d+2}, 16, v{s0+1}")
                A(f"v_and_b32 v{d+3}, 0xffff0000, v{s0+1}")
    FR = 72
    A("v_add_u32 v136, 32768, v5")
    A("v_add_u32 v137, 32768, v6")
    def rd(c):
        sl = c % G1_NSLOT; p = c % 2
        va, vb, o = ("v5", "v6", sl*G1_SLOT) if sl < 2 else ("v136", "v137", sl*G1_SLOT - 32768)
        for k in range(2):
            r = FR + 32*p + 16*k
            A(f"ds_read_b128 {vr(r,4)}, {va} offset:{o + 1024*k}")
            A(f"ds_read_b128 {vr(r+8,4)}, {vb} offset:{o + 1024*k}")
            A(f"ds_read_b128 {vr(r+4,4)}, {va} offset:{o + 2048+1024*k}")
            A(f"ds_read_b128 {vr(r+12,4)}, {vb} offset:{o + 2048+1024*k}")
    mark(A,1)
    A("s_waitcnt vmcnt(12)")
    A("s_barrier")
    rd(0)
    for c in range(14):
        if c + 1 < 14:
            out = min(c + 3, 13) - (c + 1)
            A(f"s_waitcnt vmcnt({4*out})")
            A("s_barrier")
            rd(c + 1)
            A("s_waitcnt lgkmcnt(8)")
        else:
            A("s_waitcnt lgkmcnt(0)")
        pieces = dma_pieces(((c + 4) % G1_NSLOT)*G1_SLOT) if c + 4 < 14 else [[]]*4
        for k in range(2):
            r = FR + 32*(c % 2) + 16*k
            for a_ in range(2):
                for b_ in range(2):
                    d = ACC + 32*a_ + 16*b_
                    A(f"v_mfma_f32_32x32x16_bf16 {vr(d,16)}, {vr(r+4*a_,4)}, {vr(r+8+4*b_,4)}, {vr(d,16)}")
                for l in pieces[2*k + a_]: A(l)
    mark(A,2)
    A(f"""
    s_lshl_b32 s41, s9, 2
    s_lshl_b32 s42, s33, 1
    s_add_u32 s41, s41, s42
    s_mul_i32 s41, s41, 112
    s_lshl_b32 s42, s10, 3
    s_add_u32 s41, s41, s42
    s_lshl_b32 s42, s32, 2
    s_add_u32 s41, s41, s42
    s_lshl_b32 s41, s41, 10
    s_add_u32 s42, s41, {112*1024}
    s_nop 4
    """)
    for b in range(2):
        for a in range(2):
            for kap in range(2):
                d = ACC + 32*a + 16*b + 8*kap
                mish8(A, list(range(d, d+8)), 72)
                o = 88 + 4*((2*a+kap) % 2)
                for j in range(4):
                    A(f"v_cvt_pk_bf16_f32 v{o+j}, v{d+2*j}, v{d+2*j+1}")
                A(f"buffer_store_dwordx4 {vr(o,4)}, v3, s[20:23], s{41+b} offen offset:{1024*(2*a+kap)}" + ST1)
    mark(A,3)

G2_LDS = 4*3*4096 + 4*2048
def g2_role(A, s_blk, lds0=0, R=6, wait_flags=None, XS_AT=12, ROT=True):
    A(f"""
    s_load_dwordx2 s[4:5], s[0:1], {KA['ws']}
    s_load_dwordx2 s[6:7], s[0:1], {KA['u']}
    s_load_dwordx2 s[44:45], s[0:1], {KA['out']}
    v_and_b32 v1, 63, v0
    v_lshrrev_b32 v2, 6, v0
    s_nop 0
    v_readfirstlane_b32 s8, v2
    s_and_b32 s9, {s_blk}, 31
    s_lshr_b32 s10, {s_blk}, 5
    v_lshlrev_b32 v3, 4, v1
    s_waitcnt lgkmcnt(0)
    """)
    srd(A, 12, 4, 14*112*1024, off=WS_W2F)
    srd(A, 16, 4, 64*112*1024, off=WS_HF)
    srd(A, 20, 4, 448*4096, off=WS_ST)
    srd(A, 24, 6, 2048*896)
    srd(A, 28, 44, 2048*896)
    A(f"""
    s_mul_i32 s32, s8, 28
    s_mul_i32 s33, s10, 224
    s_add_u32 s33, s33, s32
    s_lshl_b32 s33, s33, 10
    s_add_u32 s34, s33, {112*1024}
    s_mul_i32 s35, s9, 224
    s_add_u32 s35, s35, s32
    s_lshl_b32 s35, s35, 10
    s_add_u32 s36, s35, {112*1024}
    """)
    if ROT:
        A(f"s_mov_b32 s49, {(4096-28672) & 0xffffffff:#x}")
        A("""
        s_lshr_b32 s47, s9, 3
        s_lshl_b32 s47, s47, 1
        s_add_u32 s47, s47, s10
        s_cmp_ge_u32 s47, 7
        s_cselect_b32 s50, 7, 0
        s_sub_u32 s47, s47, s50
        s_lshl_b32 s50, s47, 12
        s_add_u32 s33, s33, s50
        s_add_u32 s34, s34, s50
        s_add_u32 s35, s35, s50
        s_add_u32 s36, s36, s50
        """)
    ACC = 8; FR = 72
    def load(ks):
        r = FR + 16*(ks % R); off = 1024*(ks % 4)
        A(f"buffer_load_dwordx4 {vr(r,4)}, v3, s[12:15], s33 offen offset:{off}")
        A(f"buffer_load_dwordx4 {vr(r+8,4)}, v3, s[16:19], s35 offen offset:{off}")
        A(f"buffer_load_dwordx4 {vr(r+4,4)}, v3, s[12:15], s34 offen offset:{off}")
        A(f"buffer_load_dwordx4 {vr(r+12,4)}, v3, s[16:19], s36 offen offset:{off}")
        if ks % 4 == 3:
            for s in (33, 34, 35, 36): A(f"s_add_u32 s{s}, s{s}, 4096")
    XR = 72 + 16*R
    def xloads():
        A(f"""
        s_lshr_b32 s37, s8, 1
        s_and_b32 s38, s8, 1
        s_lshl_b32 s39, s9, 6
        s_lshl_b32 s40, s38, 5
        s_add_u32 s39, s39, s40
        s_lshl_b32 s41, s10, 6
        s_lshl_b32 s40, s37, 5
        s_add_u32 s41, s41, s40
        s_mul_i32 s42, s39, 896
        s_lshl_b32 s40, s41, 1
        s_add_u32 s42, s42, s40
        v_and_b32 v4, 31, v1
        v_lshrrev_b32 v5, 5, v1
        v_mul_u32_u24 v6, 896, v4
        v_lshl_add_u32 v6, v5, 3, v6
        """)
        for j in range(4):
            A(f"buffer_load_dwordx2 {vr(XR+2*j,2)}, v6, s[24:27], s42 offen offset:{16*j}")
    def sloads():
        if wait_flags: wait_flags(A)
        A(f"""
        v_lshrrev_b32 v7, 2, v1
        v_and_b32 v{XR+16}, 3, v1
        v_lshlrev_b32 v7, 12, v7
        v_lshl_add_u32 v7, v{XR+16}, 4, v7
        s_lshl_b32 s43, s41, 12
        s_lshl_b32 s40, s39, 1
        s_add_u32 s43, s43, s40
        s_add_u32 s46, s43, {16*4096}
        buffer_load_dwordx4 {vr(XR+8,4)}, v7, s[20:23], s43 offen{' sc1' if wait_flags else ''}
        buffer_load_dwordx4 {vr(XR+12,4)}, v7, s[20:23], s46 offen{' sc1' if wait_flags else ''}
        """)
    ops = []
    def loadp(ks, i):
        r = FR + 16*(ks % R); off = 1024*(ks % 4)
        l = [f"buffer_load_dwordx4 {vr(r,4)}, v3, s[12:15], s33 offen offset:{off}",
             f"buffer_load_dwordx4 {vr(r+8,4)}, v3, s[16:19], s35 offen offset:{off}",
             f"buffer_load_dwordx4 {vr(r+4,4)}, v3, s[12:15], s34 offen offset:{off}",
             f"buffer_load_dwordx4 {vr(r+12,4)}, v3, s[16:19], s36 offen offset:{off}"][i]
        A(l); ops.append(ks)
        if i == 3 and ks % 4 == 3 and ks < 27:
            if ROT:
                A("s_cmp_eq_u32 s47, 6")
                A("s_cselect_b32 s50, s49, 4096")
                A("s_cselect_b32 s47, -1, s47")
                A("s_add_u32 s47, s47, 1")
                for s_ in (33, 34, 35, 36): A(f"s_add_u32 s{s_}, s{s_}, s50")
            else:
                for s_ in (33, 34, 35, 36): A(f"s_add_u32 s{s_}, s{s_}, 4096")
    for ks in range(R-1):
        for i in range(4): loadp(ks, i)
    for ks in range(28):
        if ks == 1: mark(A,0)
        if ks == XS_AT:
            xloads(); ops.extend([-1]*4)
            if not wait_flags: sloads(); ops.extend([-1]*2)
        last = max(i for i, t in enumerate(ops) if t == ks)
        A(f"s_waitcnt vmcnt({len(ops) - 1 - last})")
        r = FR + 16*(ks % R)
        i = 0
        for a in range(2):
            for b in range(2):
                d = ACC + 32*a + 16*b
                c = vr(d,16) if ks > 0 else "0"
                A(f"v_mfma_f32_32x32x16_bf16 {vr(d,16)}, {vr(r+4*a,4)}, {vr(r+8+4*b,4)}, {c}")
                if ks + R - 1 < 28: loadp(ks + R - 1, i)
                i += 1
    mark(A,1)
    if wait_flags: sloads()
    for o in range(4):
        pass
    Lr = [A.label(f"Lg2r{w}") for w in range(4)]; Lre = A.label("Lg2re")
    A(f"v_add_u32 v88, {lds0}, v3")
    for w in range(3):
        A(f"s_cmp_eq_u32 s8, {w}")
        A(f"s_cbranch_scc1 {Lr[w]}")
    A(f"s_branch {Lr[3]}")
    for w in range(4):
        A(f"{Lr[w]}:")
        for o in range(4):
            if o == w: continue
            slot = (w - o - 1) % 4
            d = ACC + 32*(o >> 1) + 16*(o & 1)
            for j in range(4):
                A(f"ds_write_b128 v88, {vr(d+4*j,4)} offset:{o*12288 + slot*4096 + j*1024}")
        d = ACC + 32*(w >> 1) + 16*(w & 1)
        if d != ACC:
            for i in range(16): A(f"v_mov_b32 v{ACC+i}, v{d+i}")
        A(f"s_branch {Lre}")
    A(f"{Lre}:")
    A(f"""
    s_lshl_b32 s40, s8, 11
    s_add_u32 s40, s40, {lds0 + 49152}
    v_add_u32 v89, s40, v3
    s_waitcnt vmcnt(0)
    ds_write_b128 v89, {vr(XR+8,4)}
    ds_write_b128 v89, {vr(XR+12,4)} offset:1024
    s_mul_i32 s47, s8, 12288
    v_add_u32 v88, s47, v88
    s_waitcnt lgkmcnt(0)
    """)
    mark(A,2)
    A("s_barrier")
    mark(A,3)
    for sl in range(3):
        for j in range(4):
            A(f"ds_read_b128 {vr(24+16*sl+4*j,4)}, v88 offset:{sl*4096 + j*1024}")
    A(f"""
    v_lshrrev_b32 v90, 4, v1
    v_and_b32 v91, 15, v1
    v_lshrrev_b32 v92, 2, v91
    v_and_b32 v93, 3, v91
    v_lshrrev_b32 v94, 1, v90
    v_and_b32 v90, 1, v90
    v_lshl_add_u32 v92, v94, 2, v92
    v_lshlrev_b32 v92, 6, v92
    v_lshl_add_u32 v92, v90, 5, v92
    v_lshl_add_u32 v92, v93, 3, v92
    v_add_u32 v92, s40, v92
    """)
    for j in range(4):
        A(f"ds_read_b64_tr_b16 {vr(96+2*j,2)}, v92 offset:{512*j}")
    A("s_waitcnt lgkmcnt(4)")
    for sl in range(3):
        for i in range(0, 16, 2):
            A(f"v_pk_add_f32 {vr(ACC+i,2)}, {vr(ACC+i,2)}, {vr(24+16*sl+i,2)}")
    A(f"s_mov_b32 s40, {LOG2E:#x}")
    for i in range(16): A(f"v_mul_f32 v{24+i}, s40, v{ACC+i}")
    for i in range(16): A(f"v_exp_f32 v{24+i}, -v{24+i}")
    for i in range(16): A(f"v_add_f32 v{24+i}, 1.0, v{24+i}")
    for i in range(16): A(f"v_rcp_f32 v{24+i}, v{24+i}")
    for i in range(16): A(f"v_mul_f32 v{ACC+i}, v{ACC+i}, v{24+i}")
    A("s_waitcnt lgkmcnt(0)")
    for j in range(4):
        for hlf in range(2):
            sreg = 96+2*j+hlf; xreg = XR+2*j+hlf; g0 = ACC+4*j+2*hlf
            A(f"v_lshlrev_b32 v40, 16, v{sreg}")
            A(f"v_and_b32 v41, 0xffff0000, v{sreg}")
            A(f"v_lshlrev_b32 v42, 16, v{xreg}")
            A(f"v_and_b32 v43, 0xffff0000, v{xreg}")
            A(f"v_fmac_f32 v42, v40, v{g0}")
            A(f"v_fmac_f32 v43, v41, v{g0+1}")
            A(f"v_cvt_pk_bf16_f32 v{44+2*j+hlf}, v42, v43")
        A(f"buffer_store_dwordx2 {vr(44+2*j,2)}, v6, s[28:31], s42 offen offset:{16*j}")
```

```python
from build_test import *
import kg, cv, prep, gemm, instr, sys
TS = '--ts' in sys.argv
import asmlib
if TS: asmlib.MARK[0] = instr.ts_mark
ONLY = [a[7:] for a in sys.argv if a.startswith('--only=')]
ONLY = ONLY[0] if ONLY else ''
import os
G2R = int(os.environ.get('G2R', 6))
SC1 = True
def B(A):
    if TS: instr.ts_begin(A)
def E(A, l):
    if TS: instr.ts_end(A, l)
    A('s_endpgm')
def k0(A):
    B(A)
    A("""
    s_cmp_lt_u32 s2, 64
    s_cbranch_scc1 L0_ln
    s_cmp_lt_u32 s2, 176
    s_cbranch_scc1 L0_wr
    s_cmp_ge_u32 s2, 624
    s_cbranch_scc1 L0_end
    s_sub_u32 s48, s2, 176
    """)
    kg.kg_role(A, "s48")
    E(A, 0)
    A("L0_ln:")
    A("s_mov_b32 s48, s2")
    prep.ln_role(A, "s48")
    E(A, 0)
    A("L0_wr:")
    A("s_sub_u32 s48, s2, 64")
    prep.wr_role(A, "s48")
    E(A, 0)
    A("L0_end:")
    A("s_endpgm")
def k1(A):
    B(A)
    A("""
    s_cmp_lt_u32 s2, 224
    s_cbranch_scc1 L1_g1
    s_cmp_ge_u32 s2, 448
    s_cbranch_scc1 L1_end
    s_sub_u32 s48, s2, 224
    """)
    if ONLY != 'g1': cv.cv_role(A, "s48")
    E(A, 1)
    A("L1_g1:")
    A("s_mov_b32 s48, s2")
    if ONLY != 'cv': gemm.g1_role(A, "s48")
    E(A, 1)
    A("L1_end:")
    A("s_endpgm")
def k2(A):
    B(A)
    A("""
    s_cmp_ge_u32 s2, 224
    s_cbranch_scc1 L2_end
    s_mov_b32 s48, s2
    """)
    gemm.g2_role(A, "s48", R=G2R)
    E(A, 2)
    A("L2_end:")
    A("s_endpgm")
lds0 = max(kg.KG_LDS, prep.LN_LDS, prep.WR_LDS)
build([("p0_kernel", 624, 256, lds0), ("p1_kernel", 448, 256, max(gemm.G1_LDS, cv.CV_LDS)), ("p2_kernel", 224, 256, gemm.G2_LDS)],
      {"p0_kernel": (k0, 136), "p1_kernel": (k1, 248), "p2_kernel": (k2, 72+16*G2R+20)}, ("full3_ts%s.s" % ONLY) if TS else "full3.s")

def post_sc1(fn):
    import re
    t = open(fn).read(); i2 = t.index('p2_kernel:')
    a, b = t[:i2], t[i2:]
    a = "\n".join((l + " sc1") if (re.match(r"\s*buffer_store", l) and "sc1" not in l) else l for l in a.split("\n"))
    open(fn, "w").write(a + b)
post_sc1(("full3_ts%s.s" % ONLY) if TS else "full3.s")
```

```python
from asmlib import *
import os
CVP = os.environ.get('CVP', '003')
CV_COPY = 4160
CV_U = 4*CV_COPY
CV_CH = CV_U + 512 + 4096
CV_LDS = 2*CV_CH
def cv_role(A, s_blk, lds0=0, post=None, flag=False, ksc1=False):
    if flag: A(f"s_setprio {CVP[0]}")
    A(f"""
    s_load_dwordx2 s[4:5], s[0:1], {KA['ws']}
    v_and_b32 v1, 63, v0
    v_lshrrev_b32 v2, 6, v0
    s_nop 0
    v_readfirstlane_b32 s6, v2
    s_nop 3
    s_lshr_b32 s7, s6, 1
    s_and_b32 s6, s6, 1
    s_lshl_b32 s8, {s_blk}, 1
    s_add_u32 s8, s8, s7
    s_lshl_b32 s9, s8, 12
    s_mul_i32 s10, s7, {CV_CH}
    s_add_u32 s10, s10, {lds0}
    s_waitcnt lgkmcnt(0)
    """)
    def chan_srd(s, off):
        A(f"s_add_u32 s{s}, s4, s9")
        A(f"s_addc_u32 s{s+1}, s5, 0")
        if off:
            A(f"s_add_u32 s{s}, s{s}, {off}")
            A(f"s_addc_u32 s{s+1}, s{s+1}, 0")
        A(f"s_mov_b32 s{s+2}, 4096")
        A(f"s_mov_b32 s{s+3}, 0x00020000")
    chan_srd(12, WS_K); chan_srd(16, WS_XT); chan_srd(20, WS_ST)
    KS = " sc1" if ksc1 else ""
    A(f"""
    s_lshl_b32 s11, s6, 6
    v_add_u32 v3, s11, v1
    v_lshlrev_b32 v4, 4, v3
    v_subrev_u32 v5, 8, v4
    buffer_load_dwordx4 v[8:11], v4, s[12:15], 0 offen{KS}
    buffer_load_dwordx2 v[12:13], v5, s[12:15], 0 offen{KS}
    buffer_load_dwordx4 v[16:19], v4, s[12:15], 0 offen offset:2048{KS}
    buffer_load_dwordx2 v[20:21], v4, s[12:15], 0 offen offset:2040{KS}
    buffer_load_dwordx4 v[24:27], v4, s[16:19], 0 offen
    buffer_load_dwordx4 v[28:31], v4, s[16:19], 0 offen offset:2048
    """)
    A(f"""
    v_mov_b32 v32, 0
    v_mov_b32 v33, 0
    v_mov_b32 v34, 0
    v_mov_b32 v35, 0
    v_lshlrev_b32 v6, 4, v1
    v_add_u32 v6, s10, v6
    v_cmp_gt_u32 vcc, 32, v1
    s_and_saveexec_b64 s[24:25], vcc
    ds_write_b128 v6, v[32:35] offset:{CV_U}
    s_mov_b64 exec, s[24:25]
    v_lshrrev_b32 v7, 1, v1
    v_mul_u32_u24 v7, {CV_COPY}, v7
    v_and_b32 v36, 1, v1
    v_lshl_add_u32 v7, v36, 4, v7
    v_add_u32 v7, s10, v7
    v_cmp_gt_u32 vcc, 8, v1
    s_and_saveexec_b64 s[24:25], vcc
    ds_write_b128 v7, v[32:35]
    s_mov_b64 exec, s[24:25]
    """)
    A(f"""
    v_add_u32 v36, s10, v4
    v_add_u32 v37, {CV_U+512}, v36
    v_add_u32 v36, 32, v36
    """)
    A(f"""
    v_lshrrev_b32 v40, 4, v1
    v_and_b32 v41, 15, v1
    v_lshrrev_b32 v42, 2, v41
    v_and_b32 v43, 3, v41
    v_mul_u32_u24 v38, {CV_COPY}, v42
    v_lshl_add_u32 v38, v43, 3, v38
    v_lshlrev_b32 v44, 4, v40
    v_sub_u32 v38, v38, v44
    v_add_u32 v38, 56, v38
    v_add_u32 v38, s10, v38
    v_lshlrev_b32 v39, 5, v41
    v_add_u32 v39, v39, v44
    v_add_u32 v39, {CV_U + 512 - 32 - 448}, v39
    v_add_u32 v39, s10, v39
    """)
    A(f"""
    v_lshlrev_b32 v45, 5, v41
    v_lshl_add_u32 v45, v40, 3, v45
    """)
    A("""
    v_and_b32 v61, 1, v40
    v_lshrrev_b32 v62, 1, v40
    v_lshlrev_b32 v60, 5, v41
    v_lshl_add_u32 v60, v61, 9, v60
    v_lshl_add_u32 v60, v62, 4, v60
    """)
    def build(k0, p0, woff):
        a = 46
        A(f"v_alignbyte_b32 v{a}, v{p0+1}, v{p0}, 2")
        A(f"v_alignbyte_b32 v{a+1}, v{k0}, v{p0+1}, 2")
        A(f"v_alignbyte_b32 v{a+2}, v{k0+1}, v{k0}, 2")
        A(f"v_alignbyte_b32 v{a+3}, v{k0+2}, v{k0+1}, 2")
        A(f"v_alignbyte_b32 v{a+4}, v{k0+3}, v{k0+2}, 2")
        A(f"ds_write_b128 v36, {vr(k0,4)} offset:{woff}")
        A(f"v_mov_b32 v52, v{p0+1}")
        A(f"v_mov_b32 v53, v{k0}")
        A(f"v_mov_b32 v54, v{k0+1}")
        A(f"v_mov_b32 v55, v{k0+2}")
        A(f"ds_write_b128 v36, v[52:55] offset:{woff + 2*CV_COPY}")
        A(f"ds_write_b128 v36, v[46:49] offset:{woff + 3*CV_COPY}")
        A(f"v_mov_b32 v56, v47")
        A(f"v_mov_b32 v57, v48")
        A(f"v_mov_b32 v58, v49")
        A(f"v_mov_b32 v59, v50")
        A(f"ds_write_b128 v36, v[56:59] offset:{woff + 1*CV_COPY}")
    A("s_waitcnt vmcnt(4)")
    mark(A,0)
    build(8, 12, 0)
    A("s_waitcnt vmcnt(2)")
    build(16, 20, 2048)
    A("s_waitcnt vmcnt(0)")
    A("ds_write_b128 v37, v[24:27]")
    A("ds_write_b128 v37, v[28:31] offset:2048")
    A("s_waitcnt lgkmcnt(0)")
    mark(A,1)
    A("s_barrier")
    mark(A,2)
    if flag: A(f"s_setprio {CVP[1]}")
    ACC = 64; BR = 96; AR = 224; NA = 6
    Lp1 = A.label("Lcv_p1"); Lj = A.label("Lcv_join")
    A("s_cmp_eq_u32 s6, 1")
    A(f"s_cbranch_scc1 {Lp1}")
    def variant(D):
        mmax = 8*(8 - D[0])
        ops = []
        def issueA(m):
            r = AR + 4*(m % NA)
            A(f"ds_read_b64_tr_b16 {vr(r,2)}, v38 offset:{64*m + 8}")
            A(f"ds_read_b64_tr_b16 {vr(r+2,2)}, v38 offset:{64*m}")
            ops.append(("A", m)); ops.append(("A", m))
        def issueB(mu):
            for si, d in enumerate(D):
                A(f"ds_read_b128 {vr(BR + 32*si + 4*mu, 4)}, v39 offset:{512*d + 64*(7-mu)}")
                ops.append(("B", mu))
        LA = NA - 1
        issueB(0); issueA(0); issueB(1)
        for m in range(1, LA): issueA(m)
        touched = set()
        for m in range(mmax):
            mp, mu = divmod(m, 8)
            if m + 2 < 8: issueB(m + 2)
            if m + LA < mmax: issueA(m + LA)
            need = [i for i, t in enumerate(ops) if t == ("A", m) or (mp == 0 and t == ("B", mu))]
            cnt = len(ops) - 1 - max(need)
            cnt = min(cnt, 15)
            A(f"s_waitcnt lgkmcnt({cnt})")
            r = AR + 4*(m % NA)
            for si, d in enumerate(D):
                q = mp + d
                if q > 7: continue
                c = vr(ACC + 4*q, 4) if q in touched else "0"
                touched.add(q)
                A(f"v_mfma_f32_16x16x32_bf16 {vr(ACC+4*q,4)}, {vr(r,4)}, {vr(BR+32*si+4*mu,4)}, {c}")
        return touched
    t0 = variant([0, 3, 4, 7])
    assert t0 == set(range(8))
    A(f"s_branch {Lj}")
    A(f"{Lp1}:")
    A(f"v_mov_b32 v{ACC}, 0"); A(f"v_mov_b32 v{ACC+1}, 0"); A(f"v_mov_b32 v{ACC+2}, 0"); A(f"v_mov_b32 v{ACC+3}, 0")
    t1 = variant([1, 2, 5, 6])
    assert t1 == set(range(1, 8))
    A(f"{Lj}:")
    mark(A,3)
    if flag: A(f"s_setprio {CVP[2]}")
    A(f"""
    s_barrier
    s_lshl_b32 s11, s6, 12
    s_add_u32 s11, s11, s10
    v_lshlrev_b32 v6, 4, v1
    v_add_u32 v7, s11, v6
    s_xor_b32 s26, s6, 1
    s_lshl_b32 s26, s26, 12
    s_add_u32 s26, s26, s10
    v_add_u32 v6, s26, v6
    """)
    Le1 = A.label("Lcv_e1"); Le2 = A.label("Lcv_e2")
    A("s_cmp_eq_u32 s6, 1")
    A(f"s_cbranch_scc1 {Le1}")
    def fin(send, keep):
        for j, q in enumerate(send):
            A(f"ds_write_b128 v7, {vr(ACC+4*q,4)} offset:{1024*j}")
        A("s_waitcnt lgkmcnt(0)")
        A("s_barrier")
        for j in range(4):
            A(f"ds_read_b128 {vr(8+4*j,4)}, v6 offset:{1024*j}")
        for j, q in enumerate(keep):
            A(f"s_waitcnt lgkmcnt({3-j})")
            for i in range(4):
                A(f"v_add_f32 v{8+4*j+i}, v{8+4*j+i}, v{ACC+4*q+i}")
            o = 24 + 2*j
            A(f"v_cvt_pk_bf16_f32 v{o}, v{8+4*j}, v{8+4*j+1}")
            A(f"v_cvt_pk_bf16_f32 v{o+1}, v{8+4*j+2}, v{8+4*j+3}")
            if j % 2 == 1:
                A("s_nop 1")
                A(f"v_permlane16_swap_b32 v{o-2}, v{o}")
                A(f"v_permlane16_swap_b32 v{o-1}, v{o+1}")
                A(f"buffer_store_dwordx4 {vr(o-2,4)}, v60, s[20:23], 0 offen offset:{512*(q-1)}" + (post or ""))
    fin([4,5,6,7], [0,1,2,3])
    A(f"s_branch {Le2}")
    A(f"{Le1}:")
    fin([0,1,2,3], [4,5,6,7])
    A(f"{Le2}:")
    if flag:
        Lf = A.label("Lcv_f")
        A(f"""
        s_waitcnt vmcnt(0)
        s_barrier
        v_cmp_eq_u32 vcc, 0, v0
        s_and_saveexec_b64 s[24:25], vcc
        s_cbranch_execz {Lf}
        s_lshr_b32 s26, {s_blk}, 5
        s_lshl_b32 s26, s26, 7
        s_and_b32 s27, {s_blk}, 31
        s_lshl_b32 s27, s27, 2
        s_add_u32 s26, s26, s27
        s_add_u32 s26, s26, {WS_FLAG}
        v_mov_b32 v6, s26
        v_mov_b32 v7, 1
        global_store_dword v6, v7, s[4:5] sc1
        {Lf}:
        s_mov_b64 exec, s[24:25]
        """)
    mark(A,4)
```

```python
from asmlib import *
import cv, gemm
from prep import shift_regs
def split_cv():
    T = Asm(); T.nlab = 7000
    save = MARK[0]; MARK[0] = None
    cv.cv_role(T, "s48", flag=True)
    MARK[0] = save
    L = [l for l in T.lines if "s_setprio" not in l]
    L = shift_regs(L, 52, 0)
    st = [l.strip() for l in L]
    i_b = st.index("s_waitcnt vmcnt(4)")
    i_bar = st.index("s_barrier", i_b)
    setup, build = L[:i_b], L[i_b:i_bar+1]
    setup = [l for l in setup if "s_load_dwordx2" not in l and l.strip() != "s_waitcnt lgkmcnt(0)"]
    i_p1 = next(i for i in range(i_bar, len(st)) if st[i].startswith("Lcv_p1") and st[i].endswith(":"))
    i_j = next(i for i in range(i_bar, len(st)) if st[i].startswith("Lcv_join") and st[i].endswith(":"))
    assert st[i_bar+1].startswith("s_cmp_eq_u32") and st[i_bar+2].startswith("s_cbranch_scc1") and st[i_p1-1].startswith("s_branch")
    var = [L[i_bar+3:i_p1-1], L[i_p1+1:i_j]]
    def chunks(v):
        out = [[]]; prev = False
        for l in v:
            m = "v_mfma" in l
            if prev and not m: out.append([])
            out[-1].append(l); prev = m
        return out
    var = [chunks(v) for v in var]
    i_e1 = next(i for i in range(i_j, len(st)) if st[i].startswith("Lcv_e1") and st[i].endswith(":"))
    i_e2 = next(i for i in range(i_j, len(st)) if st[i].startswith("Lcv_e2") and st[i].endswith(":"))
    i_c = next(i for i in range(i_j, i_e1) if st[i].startswith("s_cmp_eq_u32"))
    head = L[i_j+1:i_c]
    fin = [L[i_c+2:i_e1-1], L[i_e1+1:i_e2]]
    flag = L[i_e2+1:]
    return setup, build, var, head, fin, flag
import os
OCUT = int(os.environ.get('OCUT', 6))
R0 = int(os.environ.get('R0', 4))
EXTRA = int(os.environ.get('EXTRA', 2))
PRE = int(os.environ.get('PRE', 4))
def fused_role(A, s_blk, R=6, PER=6, PUB=19, XAT=15, POLL=22, CHK=25):
    setup, build, var, head, fin, flag = split_cv()
    def main(A, env):
        XR = env["XR"]
        ops = []
        def emit(lines):
            for l in lines:
                A.raw(l)
                t = l.strip()
                if t.startswith("buffer_") or t.startswith("global_"): ops.append("x")
        def vm(tag):
            last = max(i for i, t in enumerate(ops) if t == tag)
            A(f"s_waitcnt vmcnt({min(63, len(ops) - 1 - last)})")
        A("v_mov_b32 v248, v3")
        A("s_mov_b64 s[56:57], s[4:5]")
        n0 = len(ops); emit(setup)
        assert len(ops) == 6
        for i in range(6): ops[i] = f"c{i}"
        RING = 64
        def loadp(ks, i):
            r = RING + 16*(ks % R); off = 1024*(ks % 4)
            l = [f"buffer_load_dwordx4 {ar(r,4)}, v248, s[12:15], s33 offen offset:{off}",
                 f"buffer_load_dwordx4 {ar(r+8,4)}, v248, s[16:19], s35 offen offset:{off}",
                 f"buffer_load_dwordx4 {ar(r+4,4)}, v248, s[12:15], s34 offen offset:{off}",
                 f"buffer_load_dwordx4 {ar(r+12,4)}, v248, s[16:19], s36 offen offset:{off}"][i]
            A(l); ops.append(ks)
            if i == 3 and ks % 4 == 3 and ks < 27:
                for s_ in (33, 34, 35, 36): A(f"s_add_u32 s{s_}, s{s_}, 4096")
        pend = [(ks, i) for ks in range(min(R-1, R0)) for i in range(4)]
        for _ in range(PRE):
            loadp(*pend.pop(0))
        nb = 0
        for l in build:
            t = l.strip()
            if t == "s_waitcnt vmcnt(4)": vm("c1")
            elif t == "s_waitcnt vmcnt(2)": vm("c3")
            elif t == "s_waitcnt vmcnt(0)": vm("c5")
            elif t == "s_barrier":
                while pend: loadp(*pend.pop(0))
                A.raw(l)
            else:
                A.raw(l); nb += 1
                if nb % 4 == 0 and pend: loadp(*pend.pop(0))
        Lp = A.label("Lfu_p1"); Lj = A.label("Lfu_j")
        A("s_cmp_eq_u32 s58, 1")
        A(f"s_cbranch_scc1 {Lp}")
        ops0 = list(ops)
        for par in range(2):
            ops[:] = list(ops0)
            if par == 1: A(f"{Lp}:")
            rest = [(k, i) for k in range(min(R-1, R0), 28) for i in range(4)]
            q = list(var[par]); qi = 0
            while len(q) < len(var[0]): q.append([])
            def cut(lines, n):
                out = []
                for j in range(0, len(lines), n): out.append(lines[j:j+n])
                return out
            q.append(["#MARK4"])
            q += cut(list(head) + list(fin[par]), OCUT)
            stage = 2
            for ks in range(28):
                if ks == PUB:
                    A("s_waitcnt vmcnt(0)"); del ops[:]; ops.append("done")
                    fl = list(flag)
                    assert fl[0].strip() == "s_waitcnt vmcnt(0)"
                    fl = [l.replace("Lcv_f", f"Lcv_f{par}x") for l in fl[1:]]
                    emit(fl)
                    mark(A, 0)
                if ks == XAT:
                    env["xloads"](); ops.extend(["xl"]*4)
                if ks == POLL:
                    A(f"""
                    s_lshl_b32 s51, s10, 7
                    s_add_u32 s51, s51, {WS_FLAG}
                    s_lshr_b32 s52, s8, 1
                    s_lshl_b32 s52, s52, 6
                    s_add_u32 s51, s51, s52
                    v_and_b32 v{XR+17}, 15, v1
                    v_lshl_add_u32 v{XR+17}, v{XR+17}, 2, s51
                    global_load_dword v{XR+18}, v{XR+17}, s[4:5] sc1
                    """)
                    ops.append("poll")
                if ks == CHK:
                    Lsk = A.label("Lfusk")
                    vm("poll")
                    A(f"""
                    v_cmp_eq_u32 vcc, 1, v{XR+18}
                    s_mov_b32 s51, 0
                    s_nop 4
                    s_cmp_eq_u64 vcc, -1
                    s_cbranch_scc0 {Lsk}
                    s_mov_b32 s51, 1
                    """)
                    env["sloads"]()
                    A(f"{Lsk}:")
                if ks in ops: vm(ks)
                r = RING + 16*(ks % R)
                i = 0
                for a in range(2):
                    for b in range(2):
                        d = 32*a + 16*b
                        c = ar(d,16) if ks > 0 else "0"
                        A(f"v_mfma_f32_32x32x16_bf16 {ar(d,16)}, {ar(r+4*a,4)}, {ar(r+8+4*b,4)}, {c}")
                        for _ in range(2 if (i < EXTRA) else 1):
                            if rest and rest[0][0] <= ks + R - 1: loadp(*rest.pop(0))
                        i += 1
                        n = PER // 4 + (1 if (i - 1) < PER % 4 else 0)
                        for _ in range(n):
                            if qi < len(q):
                                if q[qi] == ["#MARK4"]: mark(A, 4)
                                else: emit(q[qi])
                                qi += 1
                if ks == XAT - 1 or ks == PUB - 1: assert qi >= len(q), (ks, qi, len(q))
            assert stage == 2
            if par == 0: A(f"s_branch {Lj}")
        A(f"{Lj}:")
        for i in range(64): A(f"v_accvgpr_read_b32 v{8+i}, a{i}")
        A("v_lshlrev_b32 v3, 4, v1")
    gemm.g2_role(A, s_blk, R=R, wait_flags=True, main=main)
```

```python
from asmlib import *
from gemm import mish8
import os
NSC1 = int(os.environ.get('NSC1', 8))
SLOT = 16384; NSLOT = 5
G1R_LDS = SLOT*NSLOT
def g1r_role(A, s_blk, lds0=0, XMAP=0):
    A(f"""
    s_load_dwordx2 s[4:5], s[0:1], {KA['ws']}
    s_load_dwordx2 s[6:7], s[0:1], {KA['b1']}
    s_load_dwordx2 s[50:51], s[0:1], {KA['u']}
    s_load_dwordx2 s[52:53], s[0:1], {KA['w1']}
    v_and_b32 v1, 63, v0
    v_lshrrev_b32 v2, 6, v0
    s_nop 0
    v_readfirstlane_b32 s8, v2
    """)
    if XMAP:
        A(f"""
        s_and_b32 s9, {s_blk}, 3
        s_lshl_b32 s9, s9, 2
        s_lshr_b32 s10, {s_blk}, 3
        s_and_b32 s11, s10, 3
        s_add_u32 s9, s9, s11
        s_lshr_b32 s10, s10, 2
        s_bfe_u32 s11, {s_blk}, 0x10002
        s_mul_i32 s11, s11, 7
        s_add_u32 s10, s10, s11
        """)
    else:
        A(f"s_and_b32 s9, {s_blk}, 15\ns_lshr_b32 s10, {s_blk}, 4")
    A(f"""
    s_and_b32 s32, s8, 1
    s_lshr_b32 s33, s8, 1
    v_lshrrev_b32 v4, 4, v1
    v_and_b32 v5, 15, v1
    v_lshlrev_b32 v6, 2, v4
    v_xor_b32 v5, v5, v6
    v_lshlrev_b32 v5, 4, v5
    v_mul_u32_u24 v6, 3584, v4
    v_add_u32 v176, v5, v6
    v_lshrrev_b32 v5, 2, v1
    v_and_b32 v6, 3, v1
    v_xor_b32 v6, v6, v4
    v_mul_u32_u24 v5, 896, v5
    v_lshl_add_u32 v177, v6, 4, v5
    s_mul_i32 s28, s8, {8*3584}
    s_lshl_b32 s11, s10, 8
    s_add_u32 s28, s28, s11
    s_add_u32 s29, s28, {4*3584}
    s_lshl_b32 s30, s9, 7
    s_lshl_b32 s11, s8, 5
    s_add_u32 s30, s30, s11
    s_mul_i32 s30, s30, 896
    s_add_u32 s31, s30, {16*896}
    s_lshl_b32 s34, s8, 11
    s_add_u32 s34, s34, {lds0}
    s_mov_b32 s44, {LOG2E:#x}
    s_mov_b32 s45, {LOG2E:#x}
    s_mov_b32 s46, 0x3f803f80
    s_waitcnt lgkmcnt(0)
    """)
    srd(A, 12, 52, 448*3584)
    srd(A, 16, 50, 2048*896)
    srd(A, 20, 4, 64*112*1024, off=WS_HF)
    srd(A, 24, 6, 1792*2)
    def pieces(slot_off):
        return [[f"s_add_u32 m0, s34, {slot_off}", "s_nop 0", "buffer_load_dwordx4 v176, s[12:15], s28 offen lds"],
                [f"s_add_u32 m0, s34, {slot_off + 1024}", f"s_add_u32 s28, s28, {32*3584}", "buffer_load_dwordx4 v176, s[12:15], s29 offen lds"],
                [f"s_add_u32 m0, s34, {slot_off + 8192}", f"s_add_u32 s29, s29, {32*3584}", "buffer_load_dwordx4 v177, s[16:19], s30 offen lds"],
                [f"s_add_u32 m0, s34, {slot_off + 8192 + 1024}", "s_add_u32 s30, s30, 64", "buffer_load_dwordx4 v177, s[16:19], s31 offen lds", "s_add_u32 s31, s31, 64"]]
    BI = 160
    A(f"""
    s_lshl_b32 s35, s10, 8
    s_lshl_b32 s36, s32, 7
    s_add_u32 s35, s35, s36
    s_lshl_b32 s36, s33, 6
    s_add_u32 s37, s35, s36
    s_xor_b32 s36, s36, 64
    s_add_u32 s38, s35, s36
    v_lshrrev_b32 v7, 5, v1
    v_lshlrev_b32 v8, 3, v7
    """)
    A("v_mov_b32 v190, v8")
    def bias_loads():
        for a in range(2):
            for j in range(4):
                A(f"buffer_load_dwordx2 {vr(BI+8*a+2*j,2)}, v190, s[24:27], s{37+a} offen offset:{16*j}")
    for c in range(4):
        for p in pieces(c*SLOT):
            for l in p: A(l)
    VA = 178; VB = 180
    A(f"""
    v_and_b32 v5, 15, v1
    v_lshrrev_b32 v6, 2, v5
    v_and_b32 v9, 3, v5
    v_lshl_add_u32 v10, v7, 3, v6
    v_lshlrev_b32 v10, 8, v10
    v_and_b32 v11, 1, v4
    v_lshl_add_u32 v10, v11, 5, v10
    v_lshl_add_u32 v10, v9, 3, v10
    v_add_u32 v10, {lds0}, v10
    s_lshl_b32 s39, s32, 1
    s_add_u32 s40, s39, s33
    s_xor_b32 s41, s33, 1
    s_add_u32 s41, s41, s39
    v_xor_b32 v11, s40, v6
    v_lshl_add_u32 v{VA}, v11, 6, v10
    v_xor_b32 v11, s41, v6
    v_lshl_add_u32 v{VA+1}, v11, 6, v10
    """)
    A(f"""
    v_and_b32 v5, 31, v1
    v_lshrrev_b32 v6, 2, v5
    v_and_b32 v6, 3, v6
    v_xor_b32 v6, v6, v7
    v_lshlrev_b32 v6, 4, v6
    v_lshl_add_u32 v6, v5, 6, v6
    v_add_u32 v6, {lds0 + 8192}, v6
    s_lshl_b32 s39, s33, 1
    s_add_u32 s42, s39, s32
    s_xor_b32 s43, s32, 1
    s_add_u32 s43, s43, s39
    s_lshl_b32 s47, s42, 11
    v_add_u32 v{VB}, s47, v6
    v_xor_b32 v{VB+1}, 32, v{VB}
    s_lshl_b32 s47, s43, 11
    v_add_u32 v{VB+2}, s47, v6
    v_xor_b32 v{VB+3}, 32, v{VB+2}
    """)
    for i in range(6): A(f"v_add_u32 v{VA+6+i}, 32768, v{VA+i}")
    ST = 192
    GR = 208; RS = 224; CSA = 228; SEL = 232
    A(f"""
    v_and_b32 v5, 15, v1
    v_and_b32 v6, 1, v4
    v_cmp_eq_u32 vcc, v5, v6
    v_mov_b32 v5, s46
    s_nop 0
    v_cndmask_b32 v{SEL}, 0, v5, vcc
    v_cndmask_b32 v{SEL+1}, 0, v5, vcc
    v_cndmask_b32 v{SEL+2}, 0, v5, vcc
    v_cndmask_b32 v{SEL+3}, 0, v5, vcc
    """)
    ACC = 8; FR = 72
    def rdl(c):
        sl = c % NSLOT; p = c % 2
        hi, o = (0, sl*SLOT) if sl < 2 else (6, sl*SLOT - 32768)
        L = []
        for k in range(2):
            r = FR + 32*p + 16*k
            for a in range(2):
                L.append(f"ds_read_b64_tr_b16 {vr(r+4*a,2)}, v{VA+hi+a} offset:{o + 4096*k}")
                L.append(f"ds_read_b64_tr_b16 {vr(r+4*a+2,2)}, v{VA+hi+a} offset:{o + 4096*k + 1024}")
            for b in range(2):
                L.append(f"ds_read_b128 {vr(r+8+4*b,4)}, v{VB+hi+2*b+k} offset:{o}")
        return L
    mark(A,0)
    A("s_waitcnt vmcnt(12)")
    A("s_barrier")
    for l in rdl(0): A(l)
    mark(A,1)
    for c in range(14):
        A("s_waitcnt lgkmcnt(0)")
        reads = []
        if c + 1 < 14:
            out = min(c + 3, 13) - (c + 1)
            A(f"s_waitcnt vmcnt({4*out + (8 if c >= 10 else 0)})")
            A("s_barrier")
            reads = rdl(c + 1)
        pc = pieces(((c + 4) % NSLOT)*SLOT) if c + 4 < 14 else [[]]*4
        M = []
        for k in range(2):
            r = FR + 32*(c % 2) + 16*k
            first = (c == 0 and k == 0)
            for a in range(2):
                for b in range(2):
                    d = ACC + 32*a + 16*b
                    cc = vr(d,16) if not first else "0"
                    M.append(f"v_mfma_f32_32x32x16_bf16 {vr(d,16)}, {vr(r+4*a,4)}, {vr(r+8+4*b,4)}, {cc}")
                if a == 0:
                    M.append(f"v_mfma_f32_16x16x32_bf16 {vr(RS,4)}, {vr(SEL,4)}, {vr(r+8,4)}, {'0' if first else vr(RS,4)}")
                    M.append(f"v_mfma_f32_16x16x32_bf16 {vr(CSA,4)}, {vr(SEL,4)}, {vr(r,4)}, {'0' if first else vr(CSA,4)}")
                else:
                    M.append(f"v_mfma_f32_32x32x16_bf16 {vr(GR,16)}, {vr(r+8,4)}, {vr(r+8,4)}, {'0' if first else vr(GR,16)}")
        fill = {i: [] for i in range(len(M))}
        big = [i for i, m in enumerate(M) if "32x32x16" in m]
        ri = 0
        for i in big[:6]:
            fill[i] += reads[ri:ri+2]; ri += 2
        for j, i in enumerate((2, 6, 9, 12)):
            fill[i] += pc[j]
        for i, m in enumerate(M):
            A(m)
            for l in fill[i]: A(l)
        if c == 9: bias_loads()
    mark(A,2)
    A(f"""
    v_and_b32 v5, 31, v1
    v_lshrrev_b32 v6, 3, v5
    v_and_b32 v204, 3, v5
    v_lshl_add_u32 v6, v6, 2, v204
    s_nop 7
    s_nop 7
    v_mov_b32 v{ST}, v{GR}
    """)
    for i in range(1, 16):
        A(f"v_cmp_eq_u32 vcc, {i}, v6")
        A(f"s_nop 0")
        A(f"v_cndmask_b32 v{ST}, v{ST}, v{GR+i}, vcc")
    A(f"""
    s_lshl_b32 s47, s42, 8
    s_add_u32 s47, s47, {lds0}
    v_lshl_add_u32 v205, v5, 3, s47
    v_lshrrev_b32 v6, 2, v5
    v_and_b32 v6, 1, v6
    v_cmp_eq_u32 vcc, v6, v7
    s_and_saveexec_b64 s[58:59], vcc
    ds_write_b32 v205, v{ST} offset:4
    s_mov_b64 exec, s[58:59]
    v_cmp_gt_u32 vcc, 16, v1
    v_lshl_add_u32 v205, v1, 3, s47
    s_lshl_b32 s47, s40, 7
    s_add_u32 s47, s47, {lds0 + 1024}
    v_lshl_add_u32 v206, v1, 2, s47
    s_and_saveexec_b64 s[58:59], vcc
    ds_write_b32 v205, v{RS}
    ds_write_b32 v205, v{RS+1} offset:128
    ds_write_b32 v206, v{CSA}
    ds_write_b32 v206, v{CSA+1} offset:64
    s_mov_b64 exec, s[58:59]
    s_lshl_b32 s47, s42, 8
    s_add_u32 s47, s47, {lds0}
    v_lshl_add_u32 v207, v5, 3, s47
    s_lshl_b32 s47, s43, 8
    s_add_u32 s47, s47, {lds0}
    v_lshl_add_u32 v6, v5, 3, s47
    v_lshlrev_b32 v204, 4, v7
    s_lshl_b32 s47, s40, 7
    s_add_u32 s47, s47, {lds0 + 1024}
    v_add_u32 v205, s47, v204
    s_lshl_b32 s47, s41, 7
    s_add_u32 s47, s47, {lds0 + 1024}
    v_add_u32 v206, s47, v204
    s_waitcnt lgkmcnt(0)
    s_barrier
    ds_read_b64 {vr(ST,2)}, v207
    ds_read_b64 {vr(ST+2,2)}, v6
    """)
    CS = 72; BF = 104
    for a in range(2):
        for q in range(4):
            A(f"ds_read_b128 {vr(CS+16*a+4*q,4)}, v{205+a} offset:{32*q}")
    A("s_waitcnt vmcnt(0)")
    for a in range(2):
        for j in range(4):
            s0 = BI+8*a+2*j; d = BF + 16*a + 4*j
            A(f"v_lshlrev_b32 v{d}, 16, v{s0}")
            A(f"v_and_b32 v{d+1}, 0xffff0000, v{s0}")
            A(f"v_lshlrev_b32 v{d+2}, 16, v{s0+1}")
            A(f"v_and_b32 v{d+3}, 0xffff0000, v{s0+1}")
    A("s_waitcnt lgkmcnt(8)")
    A("s_mov_b32 s47, 0x3b124925")
    RR = 200
    for b in range(2):
        s_, q_ = ST+2*b, ST+2*b+1
        A(f"""
        v_mul_f32 v{s_}, s47, v{s_}
        v_mul_f32 v{q_}, s47, v{q_}
        v_fma_f32 v{q_}, -v{s_}, v{s_}, v{q_}
        v_max_f32 v{q_}, 0, v{q_}
        v_cvt_pk_bf16_f32 v5, v{s_}, v{q_}
        v_and_b32 v6, 0xffff0000, v5
        v_lshlrev_b32 v5, 16, v5
        v_add_f32 v6, 0x3727c5ac, v6
        v_cvt_pk_bf16_f32 v6, v6, v6
        v_and_b32 v6, 0xffff0000, v6
        v_sqrt_f32 v6, v6
        s_nop 0
        v_cvt_pk_bf16_f32 v6, v6, v6
        v_and_b32 v6, 0xffff0000, v6
        v_rcp_f32 v{RR+2*b}, v6
        s_nop 0
        v_mul_f32 v{RR+2*b+1}, v5, v{RR+2*b}
        """)
    A(f"""
    s_lshl_b32 s47, s9, 2
    s_add_u32 s48, s47, s42
    s_add_u32 s49, s47, s43
    s_mul_i32 s48, s48, 112
    s_mul_i32 s49, s49, 112
    s_lshl_b32 s47, s10, 3
    s_add_u32 s48, s48, s47
    s_add_u32 s49, s49, s47
    s_lshl_b32 s40, s40, 1
    s_lshl_b32 s41, s41, 1
    s_add_u32 s54, s48, s40
    s_add_u32 s55, s48, s41
    s_add_u32 s56, s49, s40
    s_add_u32 s57, s49, s41
    s_lshl_b32 s54, s54, 10
    s_lshl_b32 s55, s55, 10
    s_lshl_b32 s56, s56, 10
    s_lshl_b32 s57, s57, 10
    v_lshlrev_b32 v3, 4, v1
    s_waitcnt lgkmcnt(0)
    """)
    TM = 136
    nst = [0]
    for b in range(2):
        for a in range(2):
            for kap in range(2):
                d = ACC + 32*a + 16*b + 8*kap
                for i in range(0, 8, 2):
                    j = 8*kap + i
                    A(f"v_pk_fma_f32 {vr(TM+i,2)}, {vr(CS+16*a+j,2)}, {vr(RR+2*b,2)}, {vr(BF+16*a+j,2)} op_sel:[0,1,0] op_sel_hi:[1,1,1] neg_lo:[1,0,0] neg_hi:[1,0,0]")
                for i in range(0, 8, 2):
                    A(f"v_pk_fma_f32 {vr(d+i,2)}, {vr(d+i,2)}, {vr(RR+2*b,2)}, {vr(TM+i,2)} op_sel:[0,0,0] op_sel_hi:[1,0,1]")
                mish8(A, list(range(d, d+8)), TM)
                o = 152 + 4*((2*a+kap) % 2)
                for j in range(4):
                    A(f"v_cvt_pk_bf16_f32 v{o+j}, v{d+2*j}, v{d+2*j+1}")
                A(f"buffer_store_dwordx4 {vr(o,4)}, v3, s[20:23], s{54+2*b+a} offen offset:{1024*kap} " + ("sc1" if nst[0] < NSC1 else "; plain")); nst[0] += 1
    mark(A,3)
```

```python
from asmlib import *
ST1 = ""
import os
G1MAP = int(os.environ.get("G1MAP", 0))
G1ROT = int(os.environ.get("G1ROT", 0))
G1_SLOT = 16384; G1_NSLOT = 5
G1_LDS = G1_SLOT*G1_NSLOT
def mish8(A, regs, tmp):
    n = len(regs); r0 = regs[0]
    T = tmp; U = tmp + n
    for i in range(0, n, 2): A(f"v_pk_mul_f32 {vr(T+i,2)}, {vr(r0+i,2)}, s[44:45]")
    for i in range(n): A(f"v_exp_f32 v{T+i}, v{T+i}")
    for i in range(0, n, 2): A(f"v_pk_add_f32 {vr(U+i,2)}, {vr(T+i,2)}, 2.0 op_sel_hi:[1,0]")
    for i in range(0, n, 2): A(f"v_pk_fma_f32 {vr(T+i,2)}, {vr(T+i,2)}, {vr(U+i,2)}, 2.0 op_sel_hi:[1,1,0]")
    for i in range(n): A(f"v_rcp_f32 v{T+i}, v{T+i}")
    for i in range(0, n, 2): A(f"v_pk_fma_f32 {vr(T+i,2)}, {vr(T+i,2)}, -2.0, 1.0 op_sel_hi:[1,0,0]")
    for i in range(0, n, 2): A(f"v_pk_mul_f32 {vr(r0+i,2)}, {vr(r0+i,2)}, {vr(T+i,2)}")

def g1_role(A, s_blk, lds0=0):
    A(f"""
    s_load_dwordx2 s[4:5], s[0:1], {KA['ws']}
    s_load_dwordx2 s[6:7], s[0:1], {KA['b1']}
    v_and_b32 v1, 63, v0
    v_lshrrev_b32 v2, 6, v0
    s_nop 0
    v_readfirstlane_b32 s8, v2
    """)
    if G1MAP:
        A(f"""
        s_and_b32 s9, {s_blk}, 3
        s_lshl_b32 s9, s9, 2
        s_lshr_b32 s10, {s_blk}, 3
        s_and_b32 s11, s10, 3
        s_add_u32 s9, s9, s11
        s_lshr_b32 s10, s10, 2
        s_bfe_u32 s11, {s_blk}, 0x10002
        s_mul_i32 s11, s11, 7
        s_add_u32 s10, s10, s11
        """)
    else:
        A(f"s_and_b32 s9, {s_blk}, 15\ns_lshr_b32 s10, {s_blk}, 4")
    A("s_waitcnt lgkmcnt(0)")
    srd(A, 12, 4, 56*28*1024, off=WS_W1F)
    srd(A, 16, 4, 64*28*1024, off=WS_XF)
    srd(A, 20, 4, 64*112*1024, off=WS_HF)
    srd(A, 24, 6, 1792*2)
    A(f"""
    s_lshl_b32 s28, s10, 2
    s_add_u32 s28, s28, s8
    s_mul_i32 s28, s28, {28*1024}
    s_lshl_b32 s29, s9, 2
    s_add_u32 s29, s29, s8
    s_mul_i32 s29, s29, {28*1024}
    s_mov_b32 s49, {(2048-14*2048) & 0xffffffff:#x}
    s_and_b32 s31, {s_blk}, 7
    s_lshl_b32 s31, s31, 1
    s_cmp_ge_u32 s31, 14
    s_cselect_b32 s33, 14, 0
    s_sub_u32 s31, s31, s33
    s_mul_i32 s31, s31, {G1ROT}
    s_lshl_b32 s33, s31, 11
    s_add_u32 s28, s28, s33
    s_add_u32 s29, s29, s33
    v_lshlrev_b32 v3, 4, v1
    s_lshl_b32 s30, s8, 11
    s_add_u32 s30, s30, {lds0}
    s_mov_b32 s44, {LOG2E:#x}
    s_mov_b32 s45, {LOG2E:#x}
    """)
    def dma_pieces(slot_off):
        return [[f"s_add_u32 m0, s30, {slot_off}", "s_nop 0", "buffer_load_dwordx4 v3, s[12:15], s28 offen lds"],
                ["buffer_load_dwordx4 v3, s[12:15], s28 offen offset:1024 lds"],
                [f"s_add_u32 m0, s30, {slot_off + 8192}", "s_nop 0", "buffer_load_dwordx4 v3, s[16:19], s29 offen lds"],
                ["buffer_load_dwordx4 v3, s[16:19], s29 offen offset:1024 lds", "s_cmp_eq_u32 s31, 13",
                 "s_cselect_b32 s47, s49, 2048", "s_cselect_b32 s31, -1, s31", "s_add_u32 s31, s31, 1",
                 "s_add_u32 s28, s28, s47", "s_add_u32 s29, s29, s47"]]
    def dma(slot_off):
        for p in dma_pieces(slot_off):
            for l in p: A(l)
    def dma_old(slot_off):
        A(f"s_add_u32 m0, s30, {slot_off}")
        A("s_nop 0")
        A("buffer_load_dwordx4 v3, s[12:15], s28 offen lds")
        A("buffer_load_dwordx4 v3, s[12:15], s28 offen offset:1024 lds")
        A("s_add_u32 m0, m0, 8192")
        A("s_add_u32 s28, s28, 2048")
        A("buffer_load_dwordx4 v3, s[16:19], s29 offen lds")
        A("buffer_load_dwordx4 v3, s[16:19], s29 offen offset:1024 lds")
        A("s_add_u32 s29, s29, 2048")
    A(f"""
    s_and_b32 s32, s8, 1
    s_lshr_b32 s33, s8, 1
    s_lshl_b32 s34, s10, 8
    s_lshl_b32 s35, s32, 7
    s_add_u32 s34, s34, s35
    v_lshrrev_b32 v4, 5, v1
    v_lshlrev_b32 v4, 3, v4
    """)
    for a in range(2):
        for j in range(4):
            A(f"buffer_load_dwordx2 {vr(72+8*a+2*j,2)}, v4, s[24:27], s34 offen offset:{64*a+16*j}")
    for c in range(4):
        dma(c*G1_SLOT)
    ACC = 8
    A(f"""
    s_lshl_b32 s35, s32, 12
    s_add_u32 s35, s35, {lds0}
    v_add_u32 v5, s35, v3
    s_lshl_b32 s36, s33, 12
    s_add_u32 s36, s36, {lds0 + 8192}
    v_add_u32 v6, s36, v3
    s_waitcnt vmcnt(16)
    """)
    mark(A,0)
    for a in range(2):
        for j in range(4):
            s0 = 72+8*a+2*j
            for b in range(2):
                d = ACC + 32*a + 16*b + 4*j
                A(f"v_lshlrev_b32 v{d}, 16, v{s0}")
                A(f"v_and_b32 v{d+1}, 0xffff0000, v{s0}")
                A(f"v_lshlrev_b32 v{d+2}, 16, v{s0+1}")
                A(f"v_and_b32 v{d+3}, 0xffff0000, v{s0+1}")
    FR = 72
    A("v_add_u32 v136, 32768, v5")
    A("v_add_u32 v137, 32768, v6")
    def rd(c):
        sl = c % G1_NSLOT; p = c % 2
        va, vb, o = ("v5", "v6", sl*G1_SLOT) if sl < 2 else ("v136", "v137", sl*G1_SLOT - 32768)
        for k in range(2):
            r = FR + 32*p + 16*k
            A(f"ds_read_b128 {vr(r,4)}, {va} offset:{o + 1024*k}")
            A(f"ds_read_b128 {vr(r+8,4)}, {vb} offset:{o + 1024*k}")
            A(f"ds_read_b128 {vr(r+4,4)}, {va} offset:{o + 2048+1024*k}")
            A(f"ds_read_b128 {vr(r+12,4)}, {vb} offset:{o + 2048+1024*k}")
    mark(A,1)
    A("s_waitcnt vmcnt(12)")
    A("s_barrier")
    rd(0)
    for c in range(14):
        if c + 1 < 14:
            out = min(c + 3, 13) - (c + 1)
            A(f"s_waitcnt vmcnt({4*out})")
            A("s_barrier")
            rd(c + 1)
            A("s_waitcnt lgkmcnt(8)")
        else:
            A("s_waitcnt lgkmcnt(0)")
        pieces = dma_pieces(((c + 4) % G1_NSLOT)*G1_SLOT) if c + 4 < 14 else [[]]*4
        for k in range(2):
            r = FR + 32*(c % 2) + 16*k
            for a_ in range(2):
                for b_ in range(2):
                    d = ACC + 32*a_ + 16*b_
                    A(f"v_mfma_f32_32x32x16_bf16 {vr(d,16)}, {vr(r+4*a_,4)}, {vr(r+8+4*b_,4)}, {vr(d,16)}")
                for l in pieces[2*k + a_]: A(l)
    mark(A,2)
    A(f"""
    s_lshl_b32 s41, s9, 2
    s_lshl_b32 s42, s33, 1
    s_add_u32 s41, s41, s42
    s_mul_i32 s41, s41, 112
    s_lshl_b32 s42, s10, 3
    s_add_u32 s41, s41, s42
    s_lshl_b32 s42, s32, 2
    s_add_u32 s41, s41, s42
    s_lshl_b32 s41, s41, 10
    s_add_u32 s42, s41, {112*1024}
    s_nop 4
    """)
    for b in range(2):
        for a in range(2):
            for kap in range(2):
                d = ACC + 32*a + 16*b + 8*kap
                mish8(A, list(range(d, d+8)), 72)
                o = 88 + 4*((2*a+kap) % 2)
                for j in range(4):
                    A(f"v_cvt_pk_bf16_f32 v{o+j}, v{d+2*j}, v{d+2*j+1}")
                A(f"buffer_store_dwordx4 {vr(o,4)}, v3, s[20:23], s{41+b} offen offset:{1024*(2*a+kap)}" + ST1)
    mark(A,3)

G2_LDS = 4*3*4096 + 4*2048
def g2_role(A, s_blk, lds0=0, R=6, wait_flags=None, XS_AT=12, ROT=False, main=None):
    A(f"""
    s_load_dwordx2 s[4:5], s[0:1], {KA['ws']}
    s_load_dwordx2 s[6:7], s[0:1], {KA['u']}
    s_load_dwordx2 s[44:45], s[0:1], {KA['out']}
    v_and_b32 v1, 63, v0
    v_lshrrev_b32 v2, 6, v0
    s_nop 0
    v_readfirstlane_b32 s8, v2
    s_and_b32 s9, {s_blk}, 31
    s_lshr_b32 s10, {s_blk}, 5
    v_lshlrev_b32 v3, 4, v1
    s_waitcnt lgkmcnt(0)
    """)
    srd(A, 12, 4, 14*112*1024, off=WS_W2F)
    srd(A, 16, 4, 64*112*1024, off=WS_HF)
    srd(A, 20, 4, 448*4096, off=WS_ST)
    srd(A, 24, 6, 2048*896)
    srd(A, 28, 44, 2048*896)
    A(f"""
    s_mul_i32 s32, s8, 28
    s_mul_i32 s33, s10, 224
    s_add_u32 s33, s33, s32
    s_lshl_b32 s33, s33, 10
    s_add_u32 s34, s33, {112*1024}
    s_mul_i32 s35, s9, 224
    s_add_u32 s35, s35, s32
    s_lshl_b32 s35, s35, 10
    s_add_u32 s36, s35, {112*1024}
    """)
    if ROT:
        A(f"s_mov_b32 s49, {(4096-28672) & 0xffffffff:#x}")
        if ROT == 2: A(f"s_and_b32 s47, {s_blk}, 7")
        else: A("s_lshr_b32 s47, s9, 3\ns_lshl_b32 s47, s47, 1\ns_add_u32 s47, s47, s10")
        A("""
        s_cmp_ge_u32 s47, 7
        s_cselect_b32 s50, 7, 0
        s_sub_u32 s47, s47, s50
        s_lshl_b32 s50, s47, 12
        s_add_u32 s33, s33, s50
        s_add_u32 s34, s34, s50
        s_add_u32 s35, s35, s50
        s_add_u32 s36, s36, s50
        """)
    ACC = 8; FR = 72
    def load(ks):
        r = FR + 16*(ks % R); off = 1024*(ks % 4)
        A(f"buffer_load_dwordx4 {vr(r,4)}, v3, s[12:15], s33 offen offset:{off}")
        A(f"buffer_load_dwordx4 {vr(r+8,4)}, v3, s[16:19], s35 offen offset:{off}")
        A(f"buffer_load_dwordx4 {vr(r+4,4)}, v3, s[12:15], s34 offen offset:{off}")
        A(f"buffer_load_dwordx4 {vr(r+12,4)}, v3, s[16:19], s36 offen offset:{off}")
        if ks % 4 == 3:
            for s in (33, 34, 35, 36): A(f"s_add_u32 s{s}, s{s}, 4096")
    XR = 72 + 16*R if main is None else 168
    def xloads():
        A(f"""
        s_lshr_b32 s37, s8, 1
        s_and_b32 s38, s8, 1
        s_lshl_b32 s39, s9, 6
        s_lshl_b32 s40, s38, 5
        s_add_u32 s39, s39, s40
        s_lshl_b32 s41, s10, 6
        s_lshl_b32 s40, s37, 5
        s_add_u32 s41, s41, s40
        s_mul_i32 s42, s39, 896
        s_lshl_b32 s40, s41, 1
        s_add_u32 s42, s42, s40
        v_and_b32 v4, 31, v1
        v_lshrrev_b32 v5, 5, v1
        v_mul_u32_u24 v6, 896, v4
        v_lshl_add_u32 v{XR+19}, v5, 4, v6
        v_lshl_add_u32 v6, v5, 3, v6
        """)
        for j in range(4):
            A(f"buffer_load_dwordx2 {vr(XR+2*j,2)}, v6, s[24:27], s42 offen offset:{16*j}")
    def sloads():
        A(f"""
        v_lshrrev_b32 v7, 2, v1
        v_and_b32 v{XR+16}, 3, v1
        v_lshlrev_b32 v7, 12, v7
        v_lshl_add_u32 v7, v{XR+16}, 4, v7
        s_lshl_b32 s43, s41, 12
        s_lshl_b32 s40, s39, 1
        s_add_u32 s43, s43, s40
        s_add_u32 s46, s43, {16*4096}
        buffer_load_dwordx4 {vr(XR+8,4)}, v7, s[20:23], s43 offen{' sc1' if wait_flags else ''}
        buffer_load_dwordx4 {vr(XR+12,4)}, v7, s[20:23], s46 offen{' sc1' if wait_flags else ''}
        """)
    if main is not None:
        main(A, dict(xloads=xloads, sloads=sloads, XR=XR))
    else:
        ops = []
        def loadp(ks, i):
            r = FR + 16*(ks % R); off = 1024*(ks % 4)
            l = [f"buffer_load_dwordx4 {vr(r,4)}, v3, s[12:15], s33 offen offset:{off}",
                 f"buffer_load_dwordx4 {vr(r+8,4)}, v3, s[16:19], s35 offen offset:{off}",
                 f"buffer_load_dwordx4 {vr(r+4,4)}, v3, s[12:15], s34 offen offset:{off}",
                 f"buffer_load_dwordx4 {vr(r+12,4)}, v3, s[16:19], s36 offen offset:{off}"][i]
            A(l); ops.append(ks)
            if i == 3 and ks % 4 == 3 and ks < 27:
                if ROT:
                    A("s_cmp_eq_u32 s47, 6")
                    A("s_cselect_b32 s50, s49, 4096")
                    A("s_cselect_b32 s47, -1, s47")
                    A("s_add_u32 s47, s47, 1")
                    for s_ in (33, 34, 35, 36): A(f"s_add_u32 s{s_}, s{s_}, s50")
                else:
                    for s_ in (33, 34, 35, 36): A(f"s_add_u32 s{s_}, s{s_}, 4096")
        for ks in range(R-1):
            for i in range(4): loadp(ks, i)
        for ks in range(28):
            if ks == 1: mark(A,0)
            if ks == XS_AT:
                xloads(); ops.extend([-1]*4)
                if not wait_flags: sloads(); ops.extend([-1]*2)
            if wait_flags and ks == 16:
                A(f"""
                s_lshl_b32 s51, s10, 7
                s_add_u32 s51, s51, {WS_FLAG}
                s_lshr_b32 s52, s8, 1
                s_lshl_b32 s52, s52, 6
                s_add_u32 s51, s51, s52
                v_and_b32 v{XR+17}, 15, v1
                v_lshl_add_u32 v{XR+17}, v{XR+17}, 2, s51
                global_load_dword v{XR+18}, v{XR+17}, s[4:5] sc1
                """)
                ops.append(-2)
            if wait_flags and ks == 21:
                Lsk = A.label("Lg2sk")
                lastp = max(i for i, t in enumerate(ops) if t == -2)
                A(f"""
                s_waitcnt vmcnt({len(ops) - 1 - lastp})
                v_cmp_eq_u32 vcc, 1, v{XR+18}
                s_mov_b32 s51, 0
                s_nop 4
                s_cmp_eq_u64 vcc, -1
                s_cbranch_scc0 {Lsk}
                s_mov_b32 s51, 1
                """)
                sloads()
                A(f"{Lsk}:")
            last = max(i for i, t in enumerate(ops) if t == ks)
            A(f"s_waitcnt vmcnt({len(ops) - 1 - last})")
            r = FR + 16*(ks % R)
            i = 0
            for a in range(2):
                for b in range(2):
                    d = ACC + 32*a + 16*b
                    c = vr(d,16) if ks > 0 else "0"
                    A(f"v_mfma_f32_32x32x16_bf16 {vr(d,16)}, {vr(r+4*a,4)}, {vr(r+8+4*b,4)}, {c}")
                    if ks + R - 1 < 28: loadp(ks + R - 1, i)
                    i += 1
    mark(A,1)
    if wait_flags:
        Lok = A.label("Lg2ok"); Lsp = A.label("Lg2sp"); Lgo = A.label("Lg2go")
        A(f"""
        s_cmp_eq_u32 s51, 1
        s_cbranch_scc1 {Lok}
        s_mov_b32 s52, 0
        {Lsp}:
        global_load_dword v{XR+18}, v{XR+17}, s[4:5] sc1
        s_waitcnt vmcnt(0)
        v_cmp_eq_u32 vcc, 1, v{XR+18}
        s_add_u32 s52, s52, 1
        s_nop 4
        s_cmp_eq_u64 vcc, -1
        s_cbranch_scc1 {Lgo}
        s_sleep 2
        s_cmp_lt_u32 s52, 20000
        s_cbranch_scc1 {Lsp}
        {Lgo}:
        """)
        sloads()
        A(f"{Lok}:")
    for o in range(4):
        pass
    Lr = [A.label(f"Lg2r{w}") for w in range(4)]; Lre = A.label("Lg2re")
    A(f"v_add_u32 v88, {lds0}, v3")
    for w in range(3):
        A(f"s_cmp_eq_u32 s8, {w}")
        A(f"s_cbranch_scc1 {Lr[w]}")
    A(f"s_branch {Lr[3]}")
    for w in range(4):
        A(f"{Lr[w]}:")
        for o in range(4):
            if o == w: continue
            slot = (w - o - 1) % 4
            d = ACC + 32*(o >> 1) + 16*(o & 1)
            for j in range(4):
                A(f"ds_write_b128 v88, {vr(d+4*j,4)} offset:{o*12288 + slot*4096 + j*1024}")
        d = ACC + 32*(w >> 1) + 16*(w & 1)
        if d != ACC:
            for i in range(16): A(f"v_mov_b32 v{ACC+i}, v{d+i}")
        A(f"s_branch {Lre}")
    A(f"{Lre}:")
    A(f"""
    s_lshl_b32 s40, s8, 11
    s_add_u32 s40, s40, {lds0 + 49152}
    v_add_u32 v89, s40, v3
    s_waitcnt vmcnt(0)
    ds_write_b128 v89, {vr(XR+8,4)}
    ds_write_b128 v89, {vr(XR+12,4)} offset:1024
    s_mul_i32 s47, s8, 12288
    v_add_u32 v88, s47, v88
    s_waitcnt lgkmcnt(0)
    """)
    mark(A,2)
    A("s_barrier")
    mark(A,3)
    for sl in range(3):
        for j in range(4):
            A(f"ds_read_b128 {vr(24+16*sl+4*j,4)}, v88 offset:{sl*4096 + j*1024}")
    A(f"""
    v_lshrrev_b32 v90, 4, v1
    v_and_b32 v91, 15, v1
    v_lshrrev_b32 v92, 2, v91
    v_and_b32 v93, 3, v91
    v_lshrrev_b32 v94, 1, v90
    v_and_b32 v90, 1, v90
    v_lshl_add_u32 v92, v94, 2, v92
    v_lshlrev_b32 v92, 6, v92
    v_lshl_add_u32 v92, v90, 5, v92
    v_lshl_add_u32 v92, v93, 3, v92
    v_add_u32 v92, s40, v92
    """)
    for j in range(4):
        A(f"ds_read_b64_tr_b16 {vr(96+2*j,2)}, v92 offset:{512*j}")
    A("s_waitcnt lgkmcnt(4)")
    for sl in range(3):
        for i in range(0, 16, 2):
            A(f"v_pk_add_f32 {vr(ACC+i,2)}, {vr(ACC+i,2)}, {vr(24+16*sl+i,2)}")
    A(f"s_mov_b32 s40, {LOG2E:#x}")
    for i in range(16): A(f"v_mul_f32 v{24+i}, s40, v{ACC+i}")
    for i in range(16): A(f"v_exp_f32 v{24+i}, -v{24+i}")
    for i in range(16): A(f"v_add_f32 v{24+i}, 1.0, v{24+i}")
    for i in range(16): A(f"v_rcp_f32 v{24+i}, v{24+i}")
    for i in range(16): A(f"v_mul_f32 v{ACC+i}, v{ACC+i}, v{24+i}")
    A("s_waitcnt lgkmcnt(0)")
    for j in range(4):
        for hlf in range(2):
            sreg = 96+2*j+hlf; xreg = XR+2*j+hlf; g0 = ACC+4*j+2*hlf
            A(f"v_lshlrev_b32 v40, 16, v{sreg}")
            A(f"v_and_b32 v41, 0xffff0000, v{sreg}")
            A(f"v_lshlrev_b32 v42, 16, v{xreg}")
            A(f"v_and_b32 v43, 0xffff0000, v{xreg}")
            A(f"v_fmac_f32 v42, v40, v{g0}")
            A(f"v_fmac_f32 v43, v41, v{g0+1}")
            A(f"v_cvt_pk_bf16_f32 v{44+2*j+hlf}, v42, v43")
        if j % 2 == 1:
            A("s_nop 1")
            A(f"v_permlane32_swap_b32 v{44+2*j-2}, v{44+2*j}")
            A(f"v_permlane32_swap_b32 v{45+2*j-2}, v{45+2*j}")
            A(f"buffer_store_dwordx4 {vr(44+2*j-2,4)}, v{XR+19}, s[28:31], s42 offen offset:{16*(j-1)}")
```

```python
from asmlib import *
WS_TS = WS_END + 4096
def ts_begin(A):
    for i in range(5): A(f"s_mov_b32 s{80+i}, 0")
    A("s_memrealtime s[90:91]")
    A("s_memtime s[92:93]")
def ts_mark(A, idx):
    A(f"s_memrealtime s[96:97]")
    A("s_waitcnt lgkmcnt(0)")
    A(f"s_mov_b32 s{80+idx}, s96")
def ts_end(A, launch):
    A(f"""
    s_waitcnt vmcnt(0) lgkmcnt(0)
    s_memrealtime s[94:95]
    s_memtime s[96:97]
    s_load_dwordx2 s[98:99], s[0:1], {KA['ws']}
    s_waitcnt lgkmcnt(0)
    s_sub_u32 s96, s96, s92
    s_add_u32 s98, s98, {WS_TS + launch*65536}
    s_addc_u32 s99, s99, 0
    s_lshl_b32 s97, s2, 6
    v_mov_b32 v0, s97
    v_mov_b32 v2, s90
    v_mov_b32 v3, s94
    v_mov_b32 v4, s96
    v_mov_b32 v5, s80
    v_mov_b32 v6, s81
    v_mov_b32 v7, s82
    v_mov_b32 v8, s83
    v_mov_b32 v9, s84
    global_store_dwordx4 v0, v[2:5], s[98:99]
    global_store_dwordx4 v0, v[6:9], s[98:99] offset:16
    s_getreg_b32 s96, hwreg(HW_REG_HW_ID)
    s_getreg_b32 s97, hwreg(HW_REG_XCC_ID)
    v_mov_b32 v2, s96
    v_mov_b32 v3, s97
    global_store_dwordx2 v0, v[2:3], s[98:99] offset:32
    s_waitcnt vmcnt(0)
    """)
```

```python
from asmlib import *
KG_LDS_TILE = 16*272
KG_TAB = 4*KG_LDS_TILE
KG_LDS = KG_TAB + 720*4
def kg_role(A, s_ch, lds0=0, two=False, st_sc1=True):
    A(f"""
    s_load_dwordx4 s[4:7], s[0:1], {KA['logA']}
    s_load_dwordx4 s[8:11], s[0:1], {KA['Cre']}
    s_load_dwordx4 s[12:15], s[0:1], {KA['logdt']}
    s_load_dwordx2 s[16:17], s[0:1], {KA['ws']}
    v_and_b32 v1, 63, v0
    v_lshrrev_b32 v2, 6, v0
    s_lshl_b32 s18, {s_ch}, 9
    v_lshlrev_b32 v3, 1, v0
    v_add_u32 v3, s18, v3
    s_lshl_b32 s19, {s_ch}, 1
    s_and_b32 s19, s19, 0xfffffffc
    s_waitcnt lgkmcnt(0)
    """)
    srd(A, 20, 4, 448*512); srd(A, 24, 6, 448*512); srd(A, 28, 8, 448*512); srd(A, 32, 10, 448*512)
    A(f"""
    buffer_load_ushort v4, v3, s[20:23], 0 offen
    buffer_load_ushort v5, v3, s[24:27], 0 offen
    buffer_load_ushort v6, v3, s[28:31], 0 offen
    buffer_load_ushort v7, v3, s[32:35], 0 offen
    s_load_dword s58, s[12:13], s19
    s_load_dword s59, s[14:15], s19
    """)
    if two:
        for i, sr_ in enumerate((20, 24, 28, 32)):
            A(f"buffer_load_ushort v{140+i}, v3, s[{sr_}:{sr_+3}], 0 offen offset:512")
    srd(A, 40, 16, 448*4096, off=WS_K if WS_K else None)
    A(f"""
    v_mov_b32 v10, 0
    v_cmp_le_u32 vcc, 32, v0
    v_lshlrev_b32 v14, 3, v0
    v_addc_co_u32 v10, vcc, 0, v10, vcc
    v_cmp_le_u32 vcc, 64, v0
    s_nop 1
    v_addc_co_u32 v10, vcc, 0, v10, vcc
    v_cmp_le_u32 vcc, 128, v0
    s_nop 1
    v_addc_co_u32 v10, vcc, 0, v10, vcc
    v_mov_b32 v15, 1
    v_lshlrev_b32 v11, v10, v15
    v_lshrrev_b32 v11, 1, v11
    v_min_u32 v12, 1, v10
    v_sub_u32 v11, v11, v12
    v_lshlrev_b32 v13, 9, v10
    v_add_u32 v13, {lds0+KG_TAB}, v13
    """)
    for e in range(8):
        A(f"""
        v_add_u32 v15, {e}, v14
        v_lshrrev_b32 v16, v10, v15
        v_and_b32 v16, v16, v12
        v_add3_u32 v15, v15, v11, v16
        v_lshrrev_b32 v15, v10, v15
        v_lshl_add_u32 v{100+e}, v15, 2, v13
        """)
    A(f"""
    v_mul_u32_u24 v19, {KG_LDS_TILE}, v2
    v_add_u32 v19, {lds0}, v19
    v_lshl_add_u32 v17, v1, 2, v19
    v_and_b32 v20, 15, v1
    v_lshrrev_b32 v21, 4, v1
    v_mul_u32_u24 v18, 272, v20
    v_add_u32 v18, v18, v19
    v_lshl_add_u32 v18, v21, 4, v18
    """)
    A(f"""
    v_and_b32 v22, 1, v21
    v_lshrrev_b32 v23, 1, v21
    v_lshlrev_b32 v24, 5, v20
    v_lshl_add_u32 v24, v22, 4, v24
    v_lshl_add_u32 v24, v23, 9, v24
    v_add_u32 v90, {lds0+KG_TAB}, v24
    """)
    A(f"""
    v_lshlrev_b32 v24, 4, v20
    v_lshl_add_u32 v24, v21, 8, v24
    v_add_u32 v24, {lds0+KG_TAB+1024}, v24
    v_lshlrev_b32 v25, 3, v20
    v_lshl_add_u32 v25, v21, 8, v25
    v_add_u32 v25, {lds0+KG_TAB+1536-512}, v25
    v_cmp_gt_u32 vcc, 2, v21
    v_add_u32 v26, 8, v24
    v_add_u32 v27, 128, v25
    v_cndmask_b32 v91, v25, v24, vcc
    v_cndmask_b32 v92, v27, v26, vcc
    """)
    A(f"""
    v_lshlrev_b32 v24, 2, v20
    v_lshl_add_u32 v25, v21, 8, v24
    v_add_u32 v25, {lds0+KG_TAB+2048}, v25
    v_add_u32 v26, {lds0+KG_TAB+672*4}, v24
    v_cmp_gt_u32 vcc, 3, v21
    s_nop 1
    v_cndmask_b32 v93, v26, v25, vcc
    v_cmp_gt_u32 vcc, 2, v21
    v_add_u32 v27, 64, v25
    s_nop 0
    v_cndmask_b32 v94, v26, v27, vcc
    """)
    Lloop = A.label("Lkgloop")
    if two:
        A("s_waitcnt lgkmcnt(0)")
        A(f"{Lloop}:")
    A(f"""
    s_waitcnt lgkmcnt(0)
    s_and_b32 s44, {s_ch}, 1
    s_lshl_b32 s44, s44, 4
    s_lshr_b32 s36, s58, s44
    s_lshl_b32 s36, s36, 16
    s_lshr_b32 s37, s59, s44
    s_lshl_b32 s37, s37, 16
    s_mov_b32 s45, {LOG2E:#x}
    s_mov_b32 s46, {INV2PI:#x}
    v_mov_b32 v28, s36
    v_mul_f32 v28, s45, v28
    v_exp_f32 v28, v28
    s_nop 0
    v_cvt_pk_bf16_f32 v28, v28, v28
    v_and_b32 v28, 0xffff0000, v28
    s_waitcnt vmcnt({4 if two else 0})
    """)
    mark(A,0)
    A(f"""
    v_lshlrev_b32 v4, 16, v4
    v_lshlrev_b32 v5, 16, v5
    v_lshlrev_b32 v6, 16, v6
    v_lshlrev_b32 v7, 16, v7
    v_mul_f32 v4, s45, v4
    v_exp_f32 v4, v4
    v_mul_f32 v5, v28, v5
    v_cvt_pk_bf16_f32 v4, v4, v4
    v_and_b32 v4, 0xffff0000, v4
    v_mul_f32 v4, v28, v4
    v_mul_f32 v4, s45, v4
    v_mul_f32 v5, s46, v5
    v_add_f32 v28, v28, v28
    v_mul_f32 v30, v28, v6
    v_mul_f32 v31, v28, v7
    """)
    def cis(dst, p, conj=False):
        A(f"""
        v_mul_f32 v8, {float(-p)}, v4
        v_mul_f32 v9, {float(p)}, v5
        v_exp_f32 v8, v8
        v_fract_f32 v9, v9
        s_nop 0
        v_cos_f32 v10, v9
        v_sin_f32 v11, v9
        s_nop 0
        v_mul_f32 v{dst}, v8, v10
        v_mul_f32 v{dst+1}, {'-' if conj else ''}v8, v11
        """.replace("-1.0, v4", "-1.0, v4"))
    def lit(x):
        import struct
        return hex(struct.unpack("<I", struct.pack("<f", x))[0])
    def cis2(dst, p, conj=False):
        A(f"v_mul_f32 v8, {lit(-float(p))}, v4")
        A(f"v_mul_f32 v9, {lit(float(p))}, v5")
        A(f"v_exp_f32 v8, v8")
        A(f"v_fract_f32 v9, v9")
        A(f"s_nop 0")
        A(f"v_cos_f32 v10, v9")
        A(f"v_sin_f32 v11, v9")
        A(f"s_nop 0")
        A(f"v_mul_f32 v{dst}, v8, v10")
        if conj: A(f"v_mul_f32_e64 v{dst+1}, -v8, v11")
        else: A(f"v_mul_f32 v{dst+1}, v8, v11")
    Z = {1:32, 2:34, 3:36, 4:38, 5:40, 6:42, 7:44}
    V = 46
    W = {r: 48 + 2*(r-1) for r in range(1, 9)}
    T = 64
    cis2(W[1], 8, conj=True)
    cis2(Z[1], 1)
    cis2(V, 128)
    def put(slot, pair):
        A(f"v_cvt_pk_bf16_f32 v12, v{pair}, v{pair+1}")
        A(f"ds_write_b32 v17, v12 offset:{slot*272}")
    tog = [0]
    def putr(slot, pair):
        r = 12 + (tog[0] % 4); tog[0] += 1
        A(f"v_cvt_pk_bf16_f32 v{r}, v{pair}, v{pair+1}")
        A(f"ds_write_b32 v17, v{r} offset:{slot*272}")
    A("v_mov_b32 v12, 0x00003f80")
    A("ds_write_b32 v17, v12 offset:0")
    putr(1, W[1])
    cmul(A, W[2], W[1], W[1]); cmul(A, Z[2], Z[1], Z[1]); putr(2, W[2])
    cmul(A, W[3], W[2], W[1]); cmul(A, W[4], W[2], W[2]); cmul(A, Z[3], Z[2], Z[1]); cmul(A, Z[4], Z[2], Z[2])
    putr(3, W[3]); putr(4, W[4])
    cmul(A, W[5], W[4], W[1]); cmul(A, W[6], W[4], W[2]); cmul(A, W[7], W[4], W[3]); cmul(A, W[8], W[4], W[4])
    putr(5, W[5]); putr(6, W[6]); putr(7, W[7]); putr(8, W[8])
    for r in range(9, 16):
        t = T + 2*(r % 4)
        cmul(A, t, W[8], W[r-8]); putr(r, t)
    cmul(A, Z[5], Z[4], Z[1]); cmul(A, Z[6], Z[4], Z[2]); cmul(A, Z[7], Z[4], Z[3])
    BF = 72
    A("s_waitcnt lgkmcnt(0)")
    for k in range(4):
        A(f"ds_read_b128 {vr(BF+4*k,4)}, v18 offset:{64*k}")
    mark(A,1)
    C = [30, 48]
    cpair = {0: 30}
    nxt = [48, 50, 52, 54, 56, 58, 60, 62]
    def chain(k):
        dst = nxt[k % 8]
        cmul(A, dst, cpair[k-1], V)
        cpair[k] = dst
    AF = 108
    ACC = {0: 124, 1: 128, 2: 132}
    def tile_mfma(ti):
        A("s_waitcnt lgkmcnt(0)")
        for k in range(4):
            A(f"ds_read_b128 {vr(AF+4*k,4)}, v18 offset:{64*k}")
    def tile_mfma2(ti):
        for k in range(4):
            A(f"s_waitcnt lgkmcnt({3-k})")
            c = "0" if k == 0 else vr(ACC[ti],4)
            A(f"v_mfma_f32_16x16x32_bf16 {vr(ACC[ti],4)}, {vr(AF+4*k,4)}, {vr(BF+4*k,4)}, {c}")
    putr(0, cpair[0])
    chain(1)
    for ph in range(1, 8):
        t = T + 2*(ph % 4); cmul(A, t, cpair[0], Z[ph]); putr(ph, t)
    putr(8, cpair[1])
    chain(2)
    for ph in range(1, 8):
        t = T + 2*(ph % 4); cmul(A, t, cpair[1], Z[ph]); putr(8+ph, t)
    tile_mfma(0)
    chain(3)
    putr(0, cpair[2])
    for j, ph in enumerate((2, 4, 6)):
        t = T + 2*(j % 4); cmul(A, t, cpair[2], Z[ph]); putr(1+j, t)
    chain(4)
    putr(4, cpair[3])
    for j, ph in enumerate((2, 4, 6)):
        t = T + 2*(j % 4); cmul(A, t, cpair[3], Z[ph]); putr(5+j, t)
    A("s_waitcnt lgkmcnt(8)")
    for k in range(4):
        c = "0" if k == 0 else vr(ACC[0],4)
        A(f"v_mfma_f32_16x16x32_bf16 {vr(ACC[0],4)}, {vr(AF+4*k,4)}, {vr(BF+4*k,4)}, {c}")
    for k in range(4):
        if 4+k < 7: chain(5+k)
        else: chain(8)
        putr(8+2*k, cpair[4+k])
        t = T + 2*(k % 4); cmul(A, t, cpair[4+k], Z[4]); putr(9+2*k, t)
    tile_mfma(1)
    putr(0, cpair[8])
    for k in range(9, 17):
        chain(k); putr(k-8, cpair[k])
    A("s_waitcnt lgkmcnt(9)")
    for k in range(4):
        c = "0" if k == 0 else vr(ACC[1],4)
        A(f"v_mfma_f32_16x16x32_bf16 {vr(ACC[1],4)}, {vr(AF+4*k,4)}, {vr(BF+4*k,4)}, {c}")
    tile_mfma(2)
    A("s_waitcnt lgkmcnt(0)")
    for k in range(4):
        c = "0" if k == 0 else vr(ACC[2],4)
        A(f"v_mfma_f32_16x16x32_bf16 {vr(ACC[2],4)}, {vr(AF+4*k,4)}, {vr(BF+4*k,4)}, {c}")
    A(f"v_mul_u32_u24 v19, {KG_LDS_TILE}, v2")
    A(f"v_lshl_add_u32 v19, v1, 4, v19")
    A(f"v_add_u32 v19, {lds0}, v19")
    A(f"ds_write_b128 v19, {vr(ACC[0],4)}")
    A(f"ds_write_b128 v19, {vr(ACC[1],4)} offset:1024")
    A(f"v_readfirstlane_b32 s38, v2")
    A(f"v_lshlrev_b32 v20, 4, v1")
    A(f"v_lshl_add_u32 v20, v2, 10, v20")
    A(f"v_add_u32 v20, {lds0}, v20")
    A("s_nop 4")
    A(f"ds_write_b128 v19, {vr(ACC[2],4)} offset:2048")
    A("s_waitcnt lgkmcnt(0)")
    mark(A,2)
    A("s_barrier")
    Lt = [A.label(f"Lkgt{i}") for i in range(3)]; Lte = A.label("Lkgte")
    A("s_cmp_eq_u32 s38, 3")
    A(f"s_cbranch_scc1 {Lte}")
    for j in range(4):
        A(f"ds_read_b128 {vr(108+4*j,4)}, v20 offset:{j*KG_LDS_TILE}")
    A("s_waitcnt lgkmcnt(2)")
    A("v_pk_add_f32 v[108:109], v[108:109], v[112:113]")
    A("v_pk_add_f32 v[110:111], v[110:111], v[114:115]")
    A("s_waitcnt lgkmcnt(0)")
    A("v_pk_add_f32 v[116:117], v[116:117], v[120:121]")
    A("v_pk_add_f32 v[118:119], v[118:119], v[122:123]")
    A("v_pk_add_f32 v[108:109], v[108:109], v[116:117]")
    A("v_pk_add_f32 v[110:111], v[110:111], v[118:119]")
    A("s_cmp_eq_u32 s38, 1")
    A(f"s_cbranch_scc1 {Lt[1]}")
    A("s_cmp_eq_u32 s38, 2")
    A(f"s_cbranch_scc1 {Lt[2]}")
    for i in range(4):
        A(f"ds_write_b32 v90, v{108+i} offset:{4*i}")
    A(f"s_branch {Lte}")
    A(f"{Lt[1]}:")
    A("ds_write_b32 v91, v108")
    A("ds_write_b32 v91, v109 offset:4")
    A("ds_write_b32 v92, v110")
    A("ds_write_b32 v92, v111 offset:4")
    A(f"s_branch {Lte}")
    A(f"{Lt[2]}:")
    A("ds_write_b32 v93, v108")
    A("ds_write_b32 v94, v109")
    A("ds_write_b32 v94, v110 offset:64")
    A("ds_write_b32 v94, v111 offset:128")
    A(f"{Lte}:")
    A("s_waitcnt lgkmcnt(0)")
    mark(A,3)
    A("s_barrier")
    mark(A,4)
    for e in range(8):
        A(f"ds_read_b32 v{108+e}, v{100+e}")
    A(f"""
    v_cmp_eq_u32 vcc, 0, v0
    v_mov_b32 v8, s37
    s_nop 0
    v_cndmask_b32 v8, 0, v8, vcc
    s_lshl_b32 s18, {s_ch}, 12
    v_lshlrev_b32 v9, 4, v0
    v_add_u32 v9, s18, v9
    s_waitcnt lgkmcnt(0)
    v_add_f32 v108, v108, v8
    v_cvt_pk_bf16_f32 v108, v108, v109
    v_cvt_pk_bf16_f32 v109, v110, v111
    v_cvt_pk_bf16_f32 v110, v112, v113
    v_cvt_pk_bf16_f32 v111, v114, v115
    s_waitcnt vmcnt(0)
    buffer_store_dwordx4 v[108:111], v9, s[40:43], 0 offen {"sc1" if st_sc1 else "; plain"}
    """)
    if two:
        Lend = A.label("Lkgend")
        A(f"""
        s_bitcmp1_b32 {s_ch}, 0
        s_cbranch_scc1 {Lend}
        s_add_u32 {s_ch}, {s_ch}, 1
        v_mov_b32 v4, v140
        v_mov_b32 v5, v141
        v_mov_b32 v6, v142
        v_mov_b32 v7, v143
        s_branch {Lloop}
        {Lend}:
        """)
```

```python
from asmlib import *
LN_S = 224
LN_WAVE = 32*LN_S
LN_LDS = 4*LN_WAVE + 4*64*8
def ln_role(A, s_tt, lds0=0, xf=True):
    A(f"""
    s_load_dwordx2 s[4:5], s[0:1], {KA['u']}
    s_load_dwordx2 s[6:7], s[0:1], {KA['ws']}
    v_and_b32 v1, 63, v0
    v_lshrrev_b32 v2, 6, v0
    v_and_b32 v3, 31, v1
    v_lshrrev_b32 v4, 5, v1
    v_readfirstlane_b32 s8, v2
    s_mul_i32 s9, {s_tt}, {32*896}
    v_mul_u32_u24 v5, 896, v3
    v_lshl_add_u32 v5, v4, 4, v5
    s_mul_i32 s10, s8, 224
    s_add_u32 s9, s9, s10
    s_waitcnt lgkmcnt(0)
    """)
    srd(A, 12, 4, 2048*896)
    srd(A, 16, 6, 64*28*1024, off=WS_XF)
    srd(A, 20, 6, 448*4096, off=WS_XT)
    for k in range(7):
        A(f"buffer_load_dwordx4 {vr(8+4*k,4)}, v5, s[12:15], s9 offen offset:{32*k}")
    mark(A,0)
    A("v_mov_b32 v36, 0\nv_mov_b32 v37, 0\nv_mov_b32 v38, 0\nv_mov_b32 v39, 0")
    for k in range(7):
        A(f"s_waitcnt vmcnt({6-k})")
        for j in range(4):
            src = 8+4*k+j; lo = 40+8*k+2*j; hi = lo+1
            A(f"v_lshlrev_b32 v{lo}, 16, v{src}")
            A(f"v_and_b32 v{hi}, 0xffff0000, v{src}")
            A(f"v_add_f32 v36, v36, v{lo}")
            A(f"v_add_f32 v37, v37, v{hi}")
            A(f"v_fmac_f32 v38, v{lo}, v{lo}")
            A(f"v_fmac_f32 v39, v{hi}, v{hi}")
    A(f"""
    v_add_f32 v36, v36, v37
    v_add_f32 v37, v38, v39
    v_lshlrev_b32 v6, 3, v1
    v_lshl_add_u32 v6, v2, 9, v6
    v_add_u32 v6, {lds0 + 4*LN_WAVE}, v6
    ds_write_b64 v6, v[36:37]
    s_waitcnt lgkmcnt(0)
    s_barrier
    v_lshlrev_b32 v6, 3, v3
    v_add_u32 v6, {lds0 + 4*LN_WAVE}, v6
    """)
    for w in range(4):
        A(f"ds_read_b64 {vr(8+4*w,2)}, v6 offset:{512*w}")
        A(f"ds_read_b64 {vr(10+4*w,2)}, v6 offset:{512*w+256}")
    A("s_waitcnt lgkmcnt(0)")
    A("""
    v_pk_add_f32 v[8:9], v[8:9], v[10:11]
    v_pk_add_f32 v[12:13], v[12:13], v[14:15]
    v_pk_add_f32 v[16:17], v[16:17], v[18:19]
    v_pk_add_f32 v[20:21], v[20:21], v[22:23]
    v_pk_add_f32 v[8:9], v[8:9], v[12:13]
    v_pk_add_f32 v[16:17], v[16:17], v[20:21]
    v_pk_add_f32 v[8:9], v[8:9], v[16:17]
    s_mov_b32 s24, 0x3b124925
    v_mul_f32 v8, s24, v8
    v_mul_f32 v9, s24, v9
    v_fma_f32 v9, -v8, v8, v9
    v_max_f32 v9, 0, v9
    v_cvt_pk_bf16_f32 v10, v8, v9
    v_and_b32 v11, 0xffff0000, v10
    v_lshlrev_b32 v10, 16, v10
    v_add_f32 v11, 0x3727c5ac, v11
    v_cvt_pk_bf16_f32 v11, v11, v11
    v_and_b32 v11, 0xffff0000, v11
    v_sqrt_f32 v11, v11
    s_nop 0
    v_cvt_pk_bf16_f32 v11, v11, v11
    v_and_b32 v11, 0xffff0000, v11
    v_rcp_f32 v11, v11
    s_nop 0
    v_mul_f32 v12, v10, v11
    """)
    mark(A,1)
    A(f"""
    v_mul_u32_u24 v13, {LN_WAVE}, v2
    v_mul_u32_u24 v15, {LN_S}, v3
    v_add_u32 v13, v13, v15
    v_lshl_add_u32 v13, v4, 4, v13
    v_add_u32 v13, {lds0}, v13
    v_lshlrev_b32 v14, 4, v1
    s_mul_i32 s25, {s_tt}, 28
    s_mul_i32 s26, s8, 7
    s_add_u32 s25, s25, s26
    s_lshl_b32 s25, s25, 10
    """)
    for k in range(7):
        d = 8 + 4*(k % 2) + 16
        for j in range(4):
            lo = 40+8*k+2*j; hi = lo+1
            A(f"v_fma_f32 v{lo}, v{lo}, v11, -v12")
            A(f"v_fma_f32 v{hi}, v{hi}, v11, -v12")
            A(f"v_cvt_pk_bf16_f32 v{96+4*k+j}, v{lo}, v{hi}")
        if xf: A(f"buffer_store_dwordx4 {vr(96+4*k,4)}, v14, s[16:19], s25 offen offset:{1024*k if k < 4 else 0}" if k < 4 else
          f"buffer_store_dwordx4 {vr(96+4*k,4)}, v14, s[16:19], s27 offen offset:{1024*(k-4)}")
        if k == 3: A("s_add_u32 s27, s25, 4096")
        A(f"ds_write_b128 v13, {vr(96+4*k,4)} offset:{32*k}")
    mark(A,2)
    A(f"""
    v_lshrrev_b32 v15, 4, v1
    v_and_b32 v16, 15, v1
    v_lshrrev_b32 v17, 2, v16
    v_and_b32 v18, 3, v16
    v_lshl_add_u32 v17, v15, 3, v17
    v_mul_u32_u24 v17, {LN_S}, v17
    v_lshl_add_u32 v17, v18, 3, v17
    v_mul_u32_u24 v19, {LN_WAVE}, v2
    v_add_u32 v17, v17, v19
    v_add_u32 v17, {lds0}, v17
    v_lshlrev_b32 v20, 12, v16
    v_lshl_add_u32 v20, v15, 4, v20
    s_mul_i32 s28, s8, {112*4096}
    s_lshl_b32 s29, {s_tt}, 6
    s_add_u32 s28, s28, s29
    s_waitcnt lgkmcnt(0)
    """)
    for c in range(7):
        r = 40 + 4*c
        A(f"ds_read_b64_tr_b16 {vr(r,2)}, v17 offset:{32*c}")
        A(f"ds_read_b64_tr_b16 {vr(r+2,2)}, v17 offset:{32*c + 4*LN_S}")
    for c in range(7):
        A(f"s_waitcnt lgkmcnt({2*(6-c)})")
        A(f"buffer_store_dwordx4 {vr(40+4*c,4)}, v20, s[20:23], s28 offen")
        A(f"s_add_u32 s28, s28, {16*4096}")

    mark(A,3)
WR_LDS = 4*1024
def wr_role(A, s_task, lds0=0, w2only=False, split=None):
    A(f"""
    s_load_dwordx2 s[4:5], s[0:1], {KA['w1']}
    s_load_dwordx2 s[6:7], s[0:1], {KA['w2']}
    s_load_dwordx2 s[8:9], s[0:1], {KA['ws']}
    v_and_b32 v1, 63, v0
    v_lshrrev_b32 v2, 6, v0
    s_nop 0
    v_readfirstlane_b32 s10, v2
    s_nop 3
    s_lshl_b32 s11, {s_task}, 2
    s_add_u32 s11, s11, s10
    s_waitcnt lgkmcnt(0)
    """)
    if w2only: A("s_add_u32 s11, s11, 224")
    Lw2 = A.label("Lwr_w2"); Lgo = A.label("Lwr_go")
    A(f"""
    s_cmp_ge_u32 s11, 224
    s_cbranch_scc1 {Lw2}
    """)
    srd(A, 12, 4, 448*3584); srd(A, 16, 8, 56*28*1024, off=WS_W1F)
    A(f"""
    s_lshr_b32 s20, s11, 3
    s_and_b32 s21, s11, 7
    s_mov_b32 s22, 3584
    s_mul_i32 s23, s20, {16*3584}
    s_mul_i32 s24, s21, {7*64}
    s_add_u32 s23, s23, s24
    s_mul_i32 s25, s21, {7*28}
    s_add_u32 s25, s25, s20
    s_lshl_b32 s25, s25, 10
    s_mov_b32 s26, {28*1024}
    s_mov_b32 s27, 8
    s_mov_b32 s28, 4
    s_branch {Lgo}
    {Lw2}:
    """)
    srd(A, 12, 6, 1792*896); srd(A, 16, 8, 14*112*1024, off=WS_W2F)
    A(f"""
    s_sub_u32 s11, s11, 224
    s_lshr_b32 s20, s11, 1
    s_and_b32 s21, s11, 1
    s_mov_b32 s22, 896
    s_mul_i32 s23, s20, {16*896}
    s_mul_i32 s24, s21, {7*64}
    s_add_u32 s23, s23, s24
    s_mul_i32 s25, s21, {7*112}
    s_add_u32 s25, s25, s20
    s_lshl_b32 s25, s25, 10
    s_mov_b32 s26, {112*1024}
    s_mov_b32 s27, 4
    s_mov_b32 s28, 8
    {Lgo}:
    """)
    A(f"""
    v_lshrrev_b32 v3, 2, v1
    v_and_b32 v4, 3, v1
    v_mul_lo_u32 v5, s22, v3
    v_lshl_add_u32 v5, v4, 4, v5
    """)
    for j in range(7):
        A(f"buffer_load_dwordx4 {vr(8+4*j,4)}, v5, s[12:15], s23 offen offset:{64*j}")
    if split: split(A)
    A(f"""
    v_lshlrev_b32 v6, 10, v2
    v_add_u32 v6, {lds0}, v6
    v_lshl_add_u32 v7, v1, 4, v6
    v_lshrrev_b32 v40, 4, v1
    v_and_b32 v41, 15, v1
    v_lshrrev_b32 v42, 2, v41
    v_and_b32 v43, 3, v41
    v_and_b32 v44, 1, v40
    v_lshrrev_b32 v45, 1, v40
    v_mul_lo_u32 v45, s27, v45
    v_add_u32 v45, v45, v42
    v_lshl_add_u32 v46, v45, 6, v6
    v_lshl_add_u32 v46, v44, 5, v46
    v_lshl_add_u32 v46, v43, 3, v46
    s_lshl_b32 s28, s28, 6
    v_add_u32 v47, s28, v46
    v_lshlrev_b32 v48, 4, v1
    """)
    for j in range(7):
        if not split: A("s_waitcnt vmcnt(6)")
        A(f"ds_write_b128 v7, {vr(8+4*j,4)}")
        r = 52 + 4*(j % 2)
        A(f"ds_read_b64_tr_b16 {vr(r,2)}, v46")
        A(f"ds_read_b64_tr_b16 {vr(r+2,2)}, v47")
        A("s_waitcnt lgkmcnt(0)")
        A(f"buffer_store_dwordx4 {vr(r,4)}, v48, s[16:19], s25 offen")
        A("s_add_u32 s25, s25, s26")

import re
def shift_regs(lines, ds, dv, keep_s=(0, 1, 48, 96, 97, 80, 81, 82, 83, 84)):
    out = []
    for l in lines:
        if l.strip().endswith(":") or l.strip().startswith("s_branch") or l.strip().startswith("s_cbranch"):
            out.append(l); continue
        def fs(m):
            a = int(m.group(1)); b = int(m.group(2))
            return m.group(0) if a in keep_s else f"s[{a+ds}:{b+ds}]"
        l = re.sub(r"\bs\[(\d+):(\d+)\]", fs, l)
        l = re.sub(r"\bs(\d+)\b", lambda m: m.group(0) if int(m.group(1)) in keep_s else f"s{int(m.group(1))+ds}", l)
        l = re.sub(r"\bv\[(\d+):(\d+)\]", lambda m: f"v[{int(m.group(1))+dv}:{int(m.group(2))+dv}]", l)
        l = re.sub(r"\bv(\d+)\b", lambda m: m.group(0) if int(m.group(1)) == 0 else f"v{int(m.group(1))+dv}", l)
        out.append(l)
    return out
def lnwr_role(A, s_tt, lds0=0):
    B = Asm(); B.nlab = A.nlab + 500
    B2 = Asm();
    cut = []
    def sp(X): cut.append(len(X.lines))
    wr_role(B, s_tt, lds0 + LN_LDS, w2only=True, split=sp)
    L = shift_regs(B.lines, 48, 128)
    l1 = A.label("Llnwr1"); l2 = A.label("Llnwr2")
    A(f"s_cmp_ge_u32 {s_tt}, 56"); A(f"s_cbranch_scc1 {l1}")
    for l in L[:cut[0]]: A.raw(l)
    ln_role(A, s_tt, lds0, xf=False)
    for l in L[cut[0]:]: A.raw(l)
    A(f"s_branch {l2}")
    A(f"{l1}:")
    ln_role(A, s_tt, lds0, xf=False)
    A(f"{l2}:")
```

```python
from build_test import *
import kg, cv, prep, gemm, g1r, fused, instr, sys, os
TS = '--ts' in sys.argv
import asmlib
if TS: asmlib.MARK[0] = instr.ts_mark
TAG = [a[6:] for a in sys.argv if a.startswith('--tag=')]
TAG = TAG[0] if TAG else ''
G2R = int(os.environ.get('G2R', 6))
XMAP = int(os.environ.get('XMAP', 0))
PKG = int(os.environ.get('PKG', 3)); PG2 = int(os.environ.get('PG2', 3))
ONLY = os.environ.get('ONLY', '')
NOXT = int(os.environ.get('NOXT', 1))
KGS = int(os.environ.get('KGS', 0)); PK1 = int(os.environ.get('PK1', 0))
PF = int(os.environ.get('PF', 1))
def prefetch(A, tag, endlab, nload, vd):
    if not PF: return
    A(f'''
    s_cmp_lt_u32 s2, 32
    s_cbranch_scc0 Lpf_skip{tag}
    s_getpc_b64 s[60:61]
    Lpf_here{tag}:
    s_mov_b32 s62, {endlab}-Lpf_here{tag}
    v_lshlrev_b32 v{vd}, 7, v0
    ''')
    for i in range(nload):
        A(f'''
        v_cmp_gt_u32 vcc, s62, v{vd}
        s_and_saveexec_b64 s[64:65], vcc
        s_cbranch_execz Lpf_e{tag}_{i}
        global_load_dword v{vd+1}, v{vd}, s[60:61]
        Lpf_e{tag}_{i}:
        s_mov_b64 exec, s[64:65]
        v_add_u32 v{vd}, 32768, v{vd}
        ''')
    A(f"Lpf_skip{tag}:")
def B(A):
    if TS: instr.ts_begin(A)
def E(A, l):
    if TS: instr.ts_end(A, l)
    A('s_endpgm')
def k0(A):
    B(A)
    prefetch(A, "0", "Lcode_end", 2, 238)
    A("""
    s_cmp_lt_u32 s2, 224
    s_cbranch_scc1 L0_g1
    s_cmp_lt_u32 s2, 256
    s_cbranch_scc1 L0_lnA
    s_cmp_lt_u32 s2, 480
    s_cbranch_scc0 L0_ln
    s_sub_u32 s48, s2, 256
    s_lshl_b32 s48, s48, 1
    """)
    A(f"s_setprio {PKG}")
    if ONLY != 'g1': kg.kg_role(A, "s48", two=(KGS == 0))
    E(A, 0)
    A("L0_g1:")
    A("s_mov_b32 s48, s2")
    g1r.g1r_role(A, "s48", XMAP=XMAP)
    E(A, 0)
    A("L0_lnA:")
    A("s_sub_u32 s48, s2, 224")
    A("s_branch L0_lnB")
    A("L0_ln:")
    A("""
    s_cmp_ge_u32 s2, 512
    s_cbranch_scc1 L0_end
    s_sub_u32 s48, s2, 448
    L0_lnB:
    """)
    A(f"""
    s_cmp_eq_u32 s48, 56
    s_cbranch_scc0 L0_ln2
    s_load_dwordx2 s[4:5], s[0:1], {KA['ws']}
    v_cmp_gt_u32 vcc, 224, v0
    s_and_saveexec_b64 s[8:9], vcc
    v_lshlrev_b32 v1, 2, v0
    v_add_u32 v1, {WS_FLAG}, v1
    v_mov_b32 v2, 0
    s_waitcnt lgkmcnt(0)
    global_store_dword v1, v2, s[4:5] sc1
    s_mov_b64 exec, s[8:9]
    """)
    A("L0_ln2:")
    prep.lnwr_role(A, "s48")
    E(A, 0)
    A("L0_end:")
    A("s_endpgm")
def k1f(A):
    B(A)
    prefetch(A, "1", "Lcode_end", 1, 250)
    A("""
    s_cmp_ge_u32 s2, 224
    s_cbranch_scc1 L1_end
    s_mov_b32 s48, s2
    """)
    fused.fused_role(A, "s48", R=G2R, PER=int(os.environ.get('PER', 6)), PUB=int(os.environ.get('PUB', 19)), POLL=int(os.environ.get('POLL', 22)), CHK=int(os.environ.get('CHK', 25)), XAT=int(os.environ.get('XAT', 15)))
    E(A, 1)
    A("L1_end:")
    A("s_endpgm")
    A("Lcode_end:")
def k1(A):
    B(A)
    prefetch(A, "1", "Lcode_end", 1, 246)
    A("""
    s_cmp_ge_u32 s2, 448
    s_cbranch_scc1 L1_end
    s_cmp_ge_u32 s2, 224
    s_cbranch_scc1 L1_g2
    s_mov_b32 s48, s2
    """)
    if KGS == 1:
        A(f"s_setprio {PK1}")
        A("s_lshl_b32 s49, s48, 1\ns_add_u32 s49, s49, 1")
        kg.kg_role(A, "s49", two=False, st_sc1=False)
        A("s_waitcnt vmcnt(0)\ns_barrier")
    cv.cv_role(A, "s48", flag=True, ksc1=(KGS == 1))
    E(A, 1)
    A("L1_g2:")
    A("s_sub_u32 s48, s2, 224")
    A(f"s_setprio {PG2}")
    gemm.g2_role(A, "s48", R=G2R, wait_flags=True)
    E(A, 1)
    A("L1_end:")
    A("s_endpgm")
    A("Lcode_end:")
lds0 = max(kg.KG_LDS, prep.LN_LDS, prep.WR_LDS, g1r.G1R_LDS)
fn = ("full2_ts%s.s" % TAG) if TS else ("full2%s.s" % TAG)
FUSE = int(os.environ.get('FUSE', 1))
if FUSE:
    build([("p0_kernel", 512, 256, lds0), ("p1_kernel", 224, 256, max(gemm.G2_LDS, cv.CV_LDS))],
      {"p0_kernel": (k0, 240), "p1_kernel": (k1f, 256 + 64 + 16*G2R, 256)}, fn)
else:
    build([("p0_kernel", 512, 256, lds0), ("p1_kernel", 448, 256, max(gemm.G2_LDS, cv.CV_LDS))],
      {"p0_kernel": (k0, 240), "p1_kernel": (k1, 248)}, fn)
import re
t = open(fn).read()
out = []
for l in t.split("\n"):
    if re.match(r"\s*buffer_store", l) and "sc1" not in l and "s[28:31]" not in l and "; plain" not in l and not (NOXT and "v20, s[20:23], s28" in l): l += " sc1"
    out.append(l)
open(fn, "w").write("\n".join(out))
```

```python
from asmlib import *
from gemm import mish8
import os
NSC1 = int(os.environ.get('NSC1', 8))
SLOT = 16384; NSLOT = 5
G1R_LDS = SLOT*NSLOT
def g1r_role(A, s_blk, lds0=0, XMAP=0):
    A(f"""
    s_load_dwordx2 s[4:5], s[0:1], {KA['ws']}
    s_load_dwordx2 s[6:7], s[0:1], {KA['b1']}
    s_load_dwordx2 s[50:51], s[0:1], {KA['u']}
    s_load_dwordx2 s[52:53], s[0:1], {KA['w1']}
    v_and_b32 v1, 63, v0
    v_lshrrev_b32 v2, 6, v0
    s_nop 0
    v_readfirstlane_b32 s8, v2
    """)
    if XMAP:
        A(f"""
        s_and_b32 s9, {s_blk}, 3
        s_lshl_b32 s9, s9, 2
        s_lshr_b32 s10, {s_blk}, 3
        s_and_b32 s11, s10, 3
        s_add_u32 s9, s9, s11
        s_lshr_b32 s10, s10, 2
        s_bfe_u32 s11, {s_blk}, 0x10002
        s_mul_i32 s11, s11, 7
        s_add_u32 s10, s10, s11
        """)
    else:
        A(f"s_and_b32 s9, {s_blk}, 15\ns_lshr_b32 s10, {s_blk}, 4")
    A(f"""
    s_and_b32 s32, s8, 1
    s_lshr_b32 s33, s8, 1
    v_lshrrev_b32 v4, 4, v1
    v_and_b32 v5, 15, v1
    v_lshlrev_b32 v6, 2, v4
    v_xor_b32 v5, v5, v6
    v_lshlrev_b32 v5, 4, v5
    v_mul_u32_u24 v6, 3584, v4
    v_add_u32 v176, v5, v6
    v_lshrrev_b32 v5, 2, v1
    v_and_b32 v6, 3, v1
    v_xor_b32 v6, v6, v4
    v_mul_u32_u24 v5, 896, v5
    v_lshl_add_u32 v177, v6, 4, v5
    s_mul_i32 s28, s8, {8*3584}
    s_lshl_b32 s11, s10, 8
    s_add_u32 s28, s28, s11
    s_add_u32 s29, s28, {4*3584}
    s_lshl_b32 s30, s9, 7
    s_lshl_b32 s11, s8, 5
    s_add_u32 s30, s30, s11
    s_mul_i32 s30, s30, 896
    s_add_u32 s31, s30, {16*896}
    s_lshl_b32 s34, s8, 11
    s_add_u32 s34, s34, {lds0}
    s_waitcnt lgkmcnt(0)
    """)
    srd(A, 12, 52, 448*3584)
    srd(A, 16, 50, 2048*896)
    def pieces(slot_off):
        return [[f"s_add_u32 m0, s34, {slot_off}", "s_nop 0", "buffer_load_dwordx4 v176, s[12:15], s28 offen lds"],
                [f"s_add_u32 m0, s34, {slot_off + 1024}", f"s_add_u32 s28, s28, {32*3584}", "buffer_load_dwordx4 v176, s[12:15], s29 offen lds"],
                [f"s_add_u32 m0, s34, {slot_off + 8192}", f"s_add_u32 s29, s29, {32*3584}", "buffer_load_dwordx4 v177, s[16:19], s30 offen lds"],
                [f"s_add_u32 m0, s34, {slot_off + 8192 + 1024}", "s_add_u32 s30, s30, 64", "buffer_load_dwordx4 v177, s[16:19], s31 offen lds", "s_add_u32 s31, s31, 64"]]
    BI = 160
    def bias_loads():
        for a in range(2):
            for j in range(4):
                A(f"buffer_load_dwordx2 {vr(BI+8*a+2*j,2)}, v190, s[24:27], s{37+a} offen offset:{16*j}")
    for c in range(4):
        for p in pieces(c*SLOT):
            for l in p: A(l)
    A(f"""
    s_mov_b32 s44, {LOG2E:#x}
    s_mov_b32 s45, {LOG2E:#x}
    s_mov_b32 s46, 0x3f803f80
    """)
    srd(A, 20, 4, 64*112*1024, off=WS_HF)
    srd(A, 24, 6, 1792*2)
    A(f"""
    s_lshl_b32 s35, s10, 8
    s_lshl_b32 s36, s32, 7
    s_add_u32 s35, s35, s36
    s_lshl_b32 s36, s33, 6
    s_add_u32 s37, s35, s36
    s_xor_b32 s36, s36, 64
    s_add_u32 s38, s35, s36
    v_lshrrev_b32 v7, 5, v1
    v_lshlrev_b32 v8, 3, v7
    """)
    A("v_mov_b32 v190, v8")
    VA = 178; VB = 180
    A(f"""
    v_and_b32 v5, 15, v1
    v_lshrrev_b32 v6, 2, v5
    v_and_b32 v9, 3, v5
    v_lshl_add_u32 v10, v7, 3, v6
    v_lshlrev_b32 v10, 8, v10
    v_and_b32 v11, 1, v4
    v_lshl_add_u32 v10, v11, 5, v10
    v_lshl_add_u32 v10, v9, 3, v10
    v_add_u32 v10, {lds0}, v10
    s_lshl_b32 s39, s32, 1
    s_add_u32 s40, s39, s33
    s_xor_b32 s41, s33, 1
    s_add_u32 s41, s41, s39
    v_xor_b32 v11, s40, v6
    v_lshl_add_u32 v{VA}, v11, 6, v10
    v_xor_b32 v11, s41, v6
    v_lshl_add_u32 v{VA+1}, v11, 6, v10
    """)
    A(f"""
    v_and_b32 v5, 31, v1
    v_lshrrev_b32 v6, 2, v5
    v_and_b32 v6, 3, v6
    v_xor_b32 v6, v6, v7
    v_lshlrev_b32 v6, 4, v6
    v_lshl_add_u32 v6, v5, 6, v6
    v_add_u32 v6, {lds0 + 8192}, v6
    s_lshl_b32 s39, s33, 1
    s_add_u32 s42, s39, s32
    s_xor_b32 s43, s32, 1
    s_add_u32 s43, s43, s39
    s_lshl_b32 s47, s42, 11
    v_add_u32 v{VB}, s47, v6
    v_xor_b32 v{VB+1}, 32, v{VB}
    s_lshl_b32 s47, s43, 11
    v_add_u32 v{VB+2}, s47, v6
    v_xor_b32 v{VB+3}, 32, v{VB+2}
    """)
    for i in range(6): A(f"v_add_u32 v{VA+6+i}, 32768, v{VA+i}")
    ST = 192
    GR = 208; RS = 224; CSA = 228; SEL = 232
    A(f"""
    v_and_b32 v5, 15, v1
    v_and_b32 v6, 1, v4
    v_cmp_eq_u32 vcc, v5, v6
    v_mov_b32 v5, s46
    s_nop 0
    v_cndmask_b32 v{SEL}, 0, v5, vcc
    v_cndmask_b32 v{SEL+1}, 0, v5, vcc
    v_cndmask_b32 v{SEL+2}, 0, v5, vcc
    v_cndmask_b32 v{SEL+3}, 0, v5, vcc
    """)
    ACC = 8; FR = 72
    def rdl(c):
        sl = c % NSLOT; p = c % 2
        hi, o = (0, sl*SLOT) if sl < 2 else (6, sl*SLOT - 32768)
        L = []
        for k in range(2):
            r = FR + 32*p + 16*k
            for a in range(2):
                L.append(f"ds_read_b64_tr_b16 {vr(r+4*a,2)}, v{VA+hi+a} offset:{o + 4096*k}")
                L.append(f"ds_read_b64_tr_b16 {vr(r+4*a+2,2)}, v{VA+hi+a} offset:{o + 4096*k + 1024}")
            for b in range(2):
                L.append(f"ds_read_b128 {vr(r+8+4*b,4)}, v{VB+hi+2*b+k} offset:{o}")
        return L
    mark(A,0)
    A("s_waitcnt vmcnt(12)")
    A("s_barrier")
    for l in rdl(0): A(l)
    mark(A,1)
    if int(os.environ.get('PMN', 0)): A(f"s_setprio {int(os.environ.get('PMN', 0))}")
    for c in range(14):
        A("s_waitcnt lgkmcnt(0)")
        reads = []
        if c + 1 < 14:
            out = min(c + 3, 13) - (c + 1)
            A(f"s_waitcnt vmcnt({4*out + (8 if c >= 10 else 0)})")
            A("s_barrier")
            reads = rdl(c + 1)
        pc = pieces(((c + 4) % NSLOT)*SLOT) if c + 4 < 14 else [[]]*4
        M = []
        for k in range(2):
            r = FR + 32*(c % 2) + 16*k
            first = (c == 0 and k == 0)
            for a in range(2):
                for b in range(2):
                    d = ACC + 32*a + 16*b
                    cc = vr(d,16) if not first else "0"
                    M.append(f"v_mfma_f32_32x32x16_bf16 {vr(d,16)}, {vr(r+4*a,4)}, {vr(r+8+4*b,4)}, {cc}")
                if a == 0:
                    M.append(f"v_mfma_f32_16x16x32_bf16 {vr(RS,4)}, {vr(SEL,4)}, {vr(r+8,4)}, {'0' if first else vr(RS,4)}")
                    M.append(f"v_mfma_f32_16x16x32_bf16 {vr(CSA,4)}, {vr(SEL,4)}, {vr(r,4)}, {'0' if first else vr(CSA,4)}")
                else:
                    M.append(f"v_mfma_f32_32x32x16_bf16 {vr(GR,16)}, {vr(r+8,4)}, {vr(r+8,4)}, {'0' if first else vr(GR,16)}")
        fill = {i: [] for i in range(len(M))}
        big = [i for i, m in enumerate(M) if "32x32x16" in m]
        ri = 0
        for i in big[:6]:
            fill[i] += reads[ri:ri+2]; ri += 2
        for j, i in enumerate((2, 6, 9, 12)):
            fill[i] += pc[j]
        for i, m in enumerate(M):
            A(m)
            for l in fill[i]: A(l)
        if c == 9: bias_loads()
    mark(A,2)
    if int(os.environ.get('PEP', 0)): A(f"s_setprio {int(os.environ.get('PEP', 0))}")
    A(f"""
    v_and_b32 v5, 31, v1
    v_lshrrev_b32 v6, 3, v5
    v_and_b32 v204, 3, v5
    v_lshl_add_u32 v6, v6, 2, v204
    s_nop 7
    s_nop 7
    v_mov_b32 v{ST}, v{GR}
    """)
    for i in range(1, 16):
        A(f"v_cmp_eq_u32 vcc, {i}, v6")
        A(f"s_nop 0")
        A(f"v_cndmask_b32 v{ST}, v{ST}, v{GR+i}, vcc")
    A(f"""
    s_lshl_b32 s47, s42, 8
    s_add_u32 s47, s47, {lds0}
    v_lshl_add_u32 v205, v5, 3, s47
    v_lshrrev_b32 v6, 2, v5
    v_and_b32 v6, 1, v6
    v_cmp_eq_u32 vcc, v6, v7
    s_and_saveexec_b64 s[58:59], vcc
    ds_write_b32 v205, v{ST} offset:4
    s_mov_b64 exec, s[58:59]
    v_cmp_gt_u32 vcc, 16, v1
    v_lshl_add_u32 v205, v1, 3, s47
    s_lshl_b32 s47, s40, 7
    s_add_u32 s47, s47, {lds0 + 1024}
    v_lshl_add_u32 v206, v1, 2, s47
    s_and_saveexec_b64 s[58:59], vcc
    ds_write_b32 v205, v{RS}
    ds_write_b32 v205, v{RS+1} offset:128
    ds_write_b32 v206, v{CSA}
    ds_write_b32 v206, v{CSA+1} offset:64
    s_mov_b64 exec, s[58:59]
    s_lshl_b32 s47, s42, 8
    s_add_u32 s47, s47, {lds0}
    v_lshl_add_u32 v207, v5, 3, s47
    s_lshl_b32 s47, s43, 8
    s_add_u32 s47, s47, {lds0}
    v_lshl_add_u32 v6, v5, 3, s47
    v_lshlrev_b32 v204, 4, v7
    s_lshl_b32 s47, s40, 7
    s_add_u32 s47, s47, {lds0 + 1024}
    v_add_u32 v205, s47, v204
    s_lshl_b32 s47, s41, 7
    s_add_u32 s47, s47, {lds0 + 1024}
    v_add_u32 v206, s47, v204
    s_waitcnt lgkmcnt(0)
    s_barrier
    ds_read_b64 {vr(ST,2)}, v207
    ds_read_b64 {vr(ST+2,2)}, v6
    """)
    CS = 72; BF = 104
    for a in range(2):
        for q in range(4):
            A(f"ds_read_b128 {vr(CS+16*a+4*q,4)}, v{205+a} offset:{32*q}")
    A("s_waitcnt vmcnt(0)")
    for a in range(2):
        for j in range(4):
            s0 = BI+8*a+2*j; d = BF + 16*a + 4*j
            A(f"v_lshlrev_b32 v{d}, 16, v{s0}")
            A(f"v_and_b32 v{d+1}, 0xffff0000, v{s0}")
            A(f"v_lshlrev_b32 v{d+2}, 16, v{s0+1}")
            A(f"v_and_b32 v{d+3}, 0xffff0000, v{s0+1}")
    A("s_waitcnt lgkmcnt(8)")
    A("s_mov_b32 s47, 0x3b124925")
    RR = 200
    for b in range(2):
        s_, q_ = ST+2*b, ST+2*b+1
        A(f"""
        v_mul_f32 v{s_}, s47, v{s_}
        v_mul_f32 v{q_}, s47, v{q_}
        v_fma_f32 v{q_}, -v{s_}, v{s_}, v{q_}
        v_max_f32 v{q_}, 0, v{q_}
        v_cvt_pk_bf16_f32 v5, v{s_}, v{q_}
        v_and_b32 v6, 0xffff0000, v5
        v_lshlrev_b32 v5, 16, v5
        v_add_f32 v6, 0x3727c5ac, v6
        v_cvt_pk_bf16_f32 v6, v6, v6
        v_and_b32 v6, 0xffff0000, v6
        v_sqrt_f32 v6, v6
        s_nop 0
        v_cvt_pk_bf16_f32 v6, v6, v6
        v_and_b32 v6, 0xffff0000, v6
        v_rcp_f32 v{RR+2*b}, v6
        s_nop 0
        v_mul_f32 v{RR+2*b+1}, v5, v{RR+2*b}
        """)
    A(f"""
    s_lshl_b32 s47, s9, 2
    s_add_u32 s48, s47, s42
    s_add_u32 s49, s47, s43
    s_mul_i32 s48, s48, 112
    s_mul_i32 s49, s49, 112
    s_lshl_b32 s47, s10, 3
    s_add_u32 s48, s48, s47
    s_add_u32 s49, s49, s47
    s_lshl_b32 s40, s40, 1
    s_lshl_b32 s41, s41, 1
    s_add_u32 s54, s48, s40
    s_add_u32 s55, s48, s41
    s_add_u32 s56, s49, s40
    s_add_u32 s57, s49, s41
    s_lshl_b32 s54, s54, 10
    s_lshl_b32 s55, s55, 10
    s_lshl_b32 s56, s56, 10
    s_lshl_b32 s57, s57, 10
    v_lshlrev_b32 v3, 4, v1
    s_waitcnt lgkmcnt(0)
    """)
    TM = 136
    nst = [0]
    for b in range(2):
        for a in range(2):
            for kap in range(2):
                d = ACC + 32*a + 16*b + 8*kap
                for i in range(0, 8, 2):
                    j = 8*kap + i
                    A(f"v_pk_fma_f32 {vr(TM+i,2)}, {vr(CS+16*a+j,2)}, {vr(RR+2*b,2)}, {vr(BF+16*a+j,2)} op_sel:[0,1,0] op_sel_hi:[1,1,1] neg_lo:[1,0,0] neg_hi:[1,0,0]")
                for i in range(0, 8, 2):
                    A(f"v_pk_fma_f32 {vr(d+i,2)}, {vr(d+i,2)}, {vr(RR+2*b,2)}, {vr(TM+i,2)} op_sel:[0,0,0] op_sel_hi:[1,0,1]")
                mish8(A, list(range(d, d+8)), TM)
                o = 152 + 4*((2*a+kap) % 2)
                for j in range(4):
                    A(f"v_cvt_pk_bf16_f32 v{o+j}, v{d+2*j}, v{d+2*j+1}")
                A(f"buffer_store_dwordx4 {vr(o,4)}, v3, s[20:23], s{54+2*b+a} offen offset:{1024*kap} " + ("sc1" if nst[0] < NSC1 else "; plain")); nst[0] += 1
    mark(A,3)
```

```python
from build_test import *
import kg, cv, prep, gemm, g1r, fused, instr, sys, os
TS = '--ts' in sys.argv
import asmlib
if TS: asmlib.MARK[0] = instr.ts_mark
TAG = [a[6:] for a in sys.argv if a.startswith('--tag=')]
TAG = TAG[0] if TAG else ''
G2R = int(os.environ.get('G2R', 6))
XMAP = int(os.environ.get('XMAP', 0))
PKG = int(os.environ.get('PKG', 3)); PG2 = int(os.environ.get('PG2', 3))
ONLY = os.environ.get('ONLY', '')
NOXT = int(os.environ.get('NOXT', 1))
KGS = int(os.environ.get('KGS', 0)); PK1 = int(os.environ.get('PK1', 0))
PF = int(os.environ.get('PF', 1))
PFLO = int(os.environ.get('PFLO', 0)); PFHI = int(os.environ.get('PFHI', 32)); PF1 = int(os.environ.get('PF1', 1))
def prefetch(A, tag, endlab, nload, vd, lo=0, hi=32, startlab=None):
    if not PF: return
    if lo == 0:
        A(f"""
        s_cmp_lt_u32 s2, {hi}
        s_cbranch_scc0 Lpf_skip{tag}
        """)
    else:
        A(f"""
        s_sub_u32 s62, s2, {lo}
        s_cmp_lt_u32 s62, {hi-lo}
        s_cbranch_scc0 Lpf_skip{tag}
        """)
    A(f"""
    s_getpc_b64 s[60:61]
    Lpf_here{tag}:
    """)
    if startlab:
        A(f"""
        s_sub_u32 s60, s60, Lpf_here{tag}-{startlab}
        s_subb_u32 s61, s61, 0
        s_mov_b32 s62, {endlab}-{startlab}
        """)
    else:
        A(f"s_mov_b32 s62, {endlab}-Lpf_here{tag}")
    A(f"""
    v_lshlrev_b32 v4, 7, v0
    """)
    for i in range(nload):
        A(f"""
        v_cmp_gt_u32 vcc, s62, v4
        s_and_saveexec_b64 s[64:65], vcc
        s_cbranch_execz Lpf_e{tag}_{i}
        v_mov_b32 v3, s61
        v_add_co_u32 v2, vcc, s60, v4
        v_addc_co_u32 v3, vcc, 0, v3, vcc
        global_load_dword v{vd}, v[2:3], off
        Lpf_e{tag}_{i}:
        s_mov_b64 exec, s[64:65]
        v_add_u32 v4, 32768, v4
        """)
    A(f"Lpf_skip{tag}:")
def data_prefetch(A, vd):
    WPF = int(os.environ.get('WPF', 0))
    if not WPF: return
    A(f"""
    s_load_dwordx2 s[68:69], s[0:1], {KA['w1']}
    s_load_dwordx2 s[72:73], s[0:1], {KA['u']}
    s_sub_u32 s62, s2, 256
    s_and_b32 s63, s62, 7
    s_lshr_b32 s62, s62, 3
    s_mul_i32 s64, s62, 57344
    v_lshlrev_b32 v2, 7, v0
    v_add_u32 v3, s64, v2
    s_cmp_ge_u32 s62, 14
    s_cselect_b32 s65, 8, 0
    s_cselect_b32 s66, 14, 0
    s_add_u32 s63, s63, s65
    s_sub_u32 s62, s62, s66
    s_mul_i32 s63, s63, 114688
    s_lshl_b32 s62, s62, 13
    s_add_u32 s63, s63, s62
    v_add_u32 v2, s63, v2
    v_add_u32 v4, 32768, v3
    s_mov_b32 s70, {448*3584}
    s_mov_b32 s71, 0x20000
    s_mov_b32 s74, {2048*896}
    s_mov_b32 s75, 0x20000
    s_waitcnt lgkmcnt(0)
    buffer_load_dword v{vd}, v3, s[68:71], 0 offen
    v_cmp_gt_u32 vcc, 192, v0
    s_and_saveexec_b64 s[64:65], vcc
    s_cbranch_execz Lwpf_a
    buffer_load_dword v{vd}, v4, s[68:71], 0 offen
    Lwpf_a:
    s_mov_b64 exec, s[64:65]
    """)
    if WPF >= 2:
        A(f"""
        v_cmp_gt_u32 vcc, 64, v0
        s_and_saveexec_b64 s[64:65], vcc
        s_cbranch_execz Lwpf_b
        buffer_load_dword v{vd}, v2, s[72:75], 0 offen
        Lwpf_b:
        s_mov_b64 exec, s[64:65]
        """)
def B(A):
    if TS: instr.ts_begin(A)
def E(A, l):
    if TS: instr.ts_end(A, l)
    A('s_endpgm')
def k0(A):
    B(A)
    G1F = int(os.environ.get('G1F', 1))
    if G1F:
        A("""
        s_cmp_lt_u32 s2, 224
        s_cbranch_scc0 L0_other
        s_mov_b32 s48, s2
        """)
        if int(os.environ.get('PG1', 0)): A(f"s_setprio {int(os.environ.get('PG1', 0))}")
        g1r.g1r_role(A, "s48", XMAP=XMAP)
        E(A, 0)
        A("L0_other:")
        prefetch(A, "0", "Lcode_end", 2, 239, lo=224, hi=256, startlab="p0_kernel")
        A("""
        s_cmp_lt_u32 s2, 256
        s_cbranch_scc1 L0_lnA
        s_cmp_lt_u32 s2, 480
        s_cbranch_scc0 L0_ln
        s_sub_u32 s48, s2, 256
        s_lshl_b32 s48, s48, 1
        """)
        data_prefetch(A, 239)
        A(f"s_setprio {PKG}")
        kg.kg_role(A, "s48", two=(KGS == 0))
        E(A, 0)
    else:
        prefetch(A, "0", "Lcode_end", 2, 239, lo=PFLO, hi=PFHI, startlab=("p0_kernel" if PFLO else None))
        A("""
    s_cmp_lt_u32 s2, 224
    s_cbranch_scc1 L0_g1
    s_cmp_lt_u32 s2, 256
    s_cbranch_scc1 L0_lnA
    s_cmp_lt_u32 s2, 480
    s_cbranch_scc0 L0_ln
    s_sub_u32 s48, s2, 256
    s_lshl_b32 s48, s48, 1
        """)
        A(f"s_setprio {PKG}")
        if ONLY != 'g1': kg.kg_role(A, "s48", two=(KGS == 0))
        E(A, 0)
        A("L0_g1:")
        A("s_mov_b32 s48, s2")
        g1r.g1r_role(A, "s48", XMAP=XMAP)
        E(A, 0)
    A("L0_lnA:")
    A("s_sub_u32 s48, s2, 224")
    A("s_branch L0_lnB")
    A("L0_ln:")
    A("""
    s_cmp_ge_u32 s2, 512
    s_cbranch_scc1 L0_end
    s_sub_u32 s48, s2, 448
    L0_lnB:
    """)
    A(f"""
    s_cmp_eq_u32 s48, 56
    s_cbranch_scc0 L0_ln2
    s_load_dwordx2 s[4:5], s[0:1], {KA['ws']}
    v_cmp_gt_u32 vcc, 224, v0
    s_and_saveexec_b64 s[8:9], vcc
    v_lshlrev_b32 v1, 2, v0
    v_add_u32 v1, {WS_FLAG}, v1
    v_mov_b32 v2, 0
    s_waitcnt lgkmcnt(0)
    global_store_dword v1, v2, s[4:5] sc1
    s_mov_b64 exec, s[8:9]
    """)
    A("L0_ln2:")
    prep.lnwr_role(A, "s48")
    E(A, 0)
    A("L0_end:")
    A("s_endpgm")
def k1f(A):
    B(A)
    PF1 and prefetch(A, "1", "Lcode_end", 1, 251)
    A("""
    s_cmp_ge_u32 s2, 224
    s_cbranch_scc1 L1_end
    s_mov_b32 s48, s2
    """)
    fused.fused_role(A, "s48", R=G2R, PER=int(os.environ.get('PER', 6)), PUB=int(os.environ.get('PUB', 19)), POLL=int(os.environ.get('POLL', 22)), CHK=int(os.environ.get('CHK', 25)), XAT=int(os.environ.get('XAT', 15)))
    E(A, 1)
    A("L1_end:")
    A("s_endpgm")
    A("Lcode_end:")
def k1(A):
    B(A)
    PF1 and prefetch(A, "1", "Lcode_end", 1, 247)
    A("""
    s_cmp_ge_u32 s2, 448
    s_cbranch_scc1 L1_end
    s_cmp_ge_u32 s2, 224
    s_cbranch_scc1 L1_g2
    s_mov_b32 s48, s2
    """)
    if KGS == 1:
        A(f"s_setprio {PK1}")
        A("s_lshl_b32 s49, s48, 1\ns_add_u32 s49, s49, 1")
        kg.kg_role(A, "s49", two=False, st_sc1=False)
        A("s_waitcnt vmcnt(0)\ns_barrier")
    cv.cv_role(A, "s48", flag=True, ksc1=(KGS == 1))
    E(A, 1)
    A("L1_g2:")
    A("s_sub_u32 s48, s2, 224")
    A(f"s_setprio {PG2}")
    gemm.g2_role(A, "s48", R=G2R, wait_flags=True)
    E(A, 1)
    A("L1_end:")
    A("s_endpgm")
    A("Lcode_end:")
lds0 = max(kg.KG_LDS, prep.LN_LDS, prep.WR_LDS, g1r.G1R_LDS)
fn = ("full2_ts%s.s" % TAG) if TS else ("full2%s.s" % TAG)
FUSE = int(os.environ.get('FUSE', 1))
if FUSE:
    build([("p0_kernel", 512, 256, lds0), ("p1_kernel", 224, 256, max(gemm.G2_LDS, cv.CV_LDS))],
      {"p0_kernel": (k0, 240), "p1_kernel": (k1f, 256 + 64 + 16*G2R, 256)}, fn)
else:
    build([("p0_kernel", 512, 256, lds0), ("p1_kernel", 448, 256, max(gemm.G2_LDS, cv.CV_LDS))],
      {"p0_kernel": (k0, 240), "p1_kernel": (k1, 248)}, fn)
import re
t = open(fn).read()
out = []
for l in t.split("\n"):
    if re.match(r"\s*buffer_store", l) and "sc1" not in l and "s[28:31]" not in l and "; plain" not in l and not (NOXT and "v20, s[20:23], s28" in l): l += " sc1"
    out.append(l)
open(fn, "w").write("\n".join(out))
```
